```python
import torch

def _softmax(x, axis=-1):
    return torch.softmax(x, dim=axis)
def _gelu(x):
    return torch.nn.functional.gelu(x, approximate="tanh")
def _silu(x):
    return torch.nn.functional.silu(x)
def _sigmoid(x):
    return torch.sigmoid(x)
def _layernorm(x, axis=-1, eps=1e-5):
    m = x.mean(dim=axis, keepdim=True)
    v = x.var(dim=axis, keepdim=True, unbiased=False)
    return (x - m) / torch.sqrt(v + eps)
def _scatter_add(tgt, idx, src, axis=0):
    return tgt.clone().index_add_(axis, idx, src)
def _segment_sum(src, seg, n):
    out = torch.zeros((n,) + src.shape[1:], dtype=src.dtype)
    return out.index_add_(0, seg, src)
def _pad(x, pw):
    flat = tuple(v for pair in reversed(pw) for v in pair)
    return torch.nn.functional.pad(x, flat)

kernel_name = 'recurrent_scan__linear_attn_block__dense_activation_squared_relu__prompt'

def setup_inputs():

    _w = (lambda a: (lambda t: t.to(torch.bfloat16) if t.is_floating_point() else t)(torch.as_tensor(a)))
    def _A_setup():
        B, S, D = 1, 2048, 448
        return {
            "x": _w((lambda *s: torch.randn(*s, dtype=torch.bfloat16) * 0.05)(B, S, D)),
            "wqkv": _w((lambda *s: torch.randn(*s, dtype=torch.bfloat16) * 0.1)(D, 3 * D)),
            "wo": _w((lambda *s: torch.randn(*s, dtype=torch.bfloat16) * 0.05)(D, D)),
        }
    _A_in = _A_setup()

    def _B_setup():
        B, S, D, F = 1, 2048, 448, 1792
        return {
            "x": _w((lambda *s: torch.randn(*s, dtype=torch.bfloat16) * 0.05)(B, S, D)),
            "w1": _w((lambda *s: torch.randn(*s, dtype=torch.bfloat16) * 0.05)(D, F)),
            "b1": _w((lambda *s: torch.randn(*s, dtype=torch.bfloat16) * 0.2)(F)),
            "w2": _w((lambda *s: torch.randn(*s, dtype=torch.bfloat16) * 0.05)(F, D)),
            "b2": _w((lambda *s: torch.randn(*s, dtype=torch.bfloat16) * 0.8)(D)),
        }
    _B_in = _B_setup()

    return {
        "A_x": _A_in["x"],
        "A_wqkv": _A_in["wqkv"],
        "A_wo": _A_in["wo"],
        "B_x": _B_in["x"],
        "B_w1": _B_in["w1"],
        "B_b1": _B_in["b1"],
        "B_w2": _B_in["w2"],
        "B_b2": _B_in["b2"],
    }

def reference(A_x, A_wqkv, A_wo, B_x, B_w1, B_b1, B_w2, B_b2):
    def _A_ref(x, wqkv, wo):
        B, S, D = x.shape
        H = 16; Dh = D // H
        qkv = (lambda x, *d: x.permute(*d))((x @ wqkv).reshape(B, S, 3, H, Dh), 2, 0, 3, 1, 4)
        q, k, v = qkv[0], qkv[1], qkv[2]
        phi = lambda t: torch.where(t > 0, t + 1, torch.exp(t)) + 1e-6
        pq, pk = phi(q), phi(k)
        kv = torch.einsum("bhsd,bhse->bhde", pk, v)
        z = torch.einsum("bhsd->bhd", pk)
        num = torch.einsum("bhqd,bhde->bhqe", pq, kv)
        den = torch.einsum("bhqd,bhd->bhq", pq, z)[..., None] + 1e-6
        o = num / den
        return (lambda x, *d: x.permute(*d))(o, 0, 2, 1, 3).reshape(B, S, D) @ wo

    def _B_ref(x, w1, b1, w2, b2):
        h = torch.einsum("bsd,df->bsf", x, w1) + b1
        zero = torch.zeros_like(h)
        r = torch.where(h > zero, h, zero)
        h = r * r
        out = torch.einsum("bsf,fd->bsd", h, w2) + b2
        return out

    x = A_x
    xn = _layernorm(x, axis=-1)
    s = _A_ref(xn, A_wqkv, A_wo)
    g = _silu(_B_ref(xn, B_w1, B_b1, B_w2, B_b2))
    return x + s * g
```

```python
import re

TRANS = ("v_exp_f32", "v_log_f32", "v_rcp_f32", "v_rsq_f32", "v_sqrt_f32", "v_sin_f32", "v_cos_f32", "v_rcp_iflag_f32")
REGRE = re.compile(r"\b([vas])(?:(\d+)|\[(\d+):(\d+)\])")

def regs_of(tok):
    out = set()
    t = tok.strip()
    if t.startswith("vcc"):
        return {("s", 106), ("s", 107)}
    if t == "m0":
        return {("m0", 0)}
    if t.startswith("exec"):
        return {("exec", 0)}
    for m in REGRE.finditer(t):
        k = m.group(1)
        if m.group(2) is not None:
            out.add((k, int(m.group(2))))
        else:
            for i in range(int(m.group(3)), int(m.group(4)) + 1):
                out.add((k, i))
    return out

class Ins:
    def __init__(self, text):
        self.text = text
        t = text.split(";")[0].strip()
        self.raw = t
        self.kind = "other"
        self.op = ""
        self.dst = set(); self.src = set(); self.srcC = set(); self.srcAB = set(); self.data = set()
        self.passes = 0
        self.states = 1
        if not t or t.endswith(":") or t.startswith("."):
            self.kind = "label" if t.endswith(":") else "none"
            self.states = 0
            return
        sp = t.split(None, 1)
        op = sp[0]
        for suf in ("_e32", "_e64", "_dpp", "_sdwa"):
            if op.endswith(suf):
                op = op[: -len(suf)]
        self.op = op
        rest = sp[1] if len(sp) > 1 else ""
        ops = []; cur = ""; d = 0
        for ch in rest:
            if ch == "[": d += 1
            if ch == "]": d -= 1
            if ch == "," and d == 0:
                ops.append(cur); cur = ""
            else:
                cur += ch
        ops.append(cur)
        ops = [o.strip() for o in ops]
        if ops:
            last = ops[-1].split()
            self.mods = last[1:]
            ops[-1] = last[0] if last else ""
        self.ops = ops
        if op == "s_nop":
            self.kind = "salu"; self.states = int(ops[0], 0) + 1; return
        if op.startswith("v_mfma"):
            self.kind = "mfma"
            self.passes = 8 if "32x32x16" in op else 4
            self.dst = regs_of(ops[0]); self.srcAB = regs_of(ops[1]) | regs_of(ops[2]); self.srcC = regs_of(ops[3])
            self.src = self.srcAB | self.srcC
            self.cstr = ops[3]; self.dstr = ops[0]
            return
        if op.startswith("v_"):
            self.kind = "valu"
            self.dst = regs_of(ops[0])
            k = 1
            if op in ("v_add_co_u32", "v_sub_co_u32", "v_addc_co_u32", "v_subb_co_u32", "v_subrev_co_u32"):
                self.dst |= regs_of(ops[1]); k = 2
            for o in ops[k:]:
                self.src |= regs_of(o)
            if op.startswith("v_permlane") and "swap" in op:
                self.dst |= regs_of(ops[1]); self.src |= regs_of(ops[0])
            if op.startswith(("v_dot2c", "v_fmac", "v_mac", "v_pk_fmac", "v_dot4c", "v_writelane")):
                self.src |= regs_of(ops[0])
            if op.startswith("v_cndmask") and len(ops) == 3:
                self.src |= regs_of("vcc")
            if op.startswith("v_cmpx"):
                self.dst |= {("exec", 0)}
            return
        if op.startswith("ds_"):
            self.kind = "ds"
            if op.startswith(("ds_read", "ds_bpermute", "ds_permute", "ds_swizzle")):
                self.dst = regs_of(ops[0])
                for o in ops[1:]: self.src |= regs_of(o)
            else:
                for o in ops: self.src |= regs_of(o)
            return
        if op.startswith(("buffer_", "global_")):
            self.kind = "vmem"
            self.lds = "lds" in self.mods
            if "load" in op and not self.lds:
                self.dst = regs_of(ops[0])
                for o in ops[1:]: self.src |= regs_of(o)
            else:
                for o in ops: self.src |= regs_of(o)
                if "store" in op and ("x3" in op or "x4" in op):
                    self.data = regs_of(ops[0]) if op.startswith("buffer_") else regs_of(ops[1])
                if "atomic" in op and "sc0" in self.mods:
                    self.dst = regs_of(ops[0])
            if self.lds: self.src |= {("m0", 0)}
            return
        if op.startswith("s_"):
            self.kind = "salu"
            if op.startswith(("s_cmp", "s_cbranch", "s_branch", "s_waitcnt", "s_barrier", "s_endpgm", "s_setpc", "s_sleep", "s_setprio", "s_bitcmp", "s_set_gpr")):
                for o in ops: self.src |= regs_of(o)
            else:
                self.dst = regs_of(ops[0])
                for o in ops[1:]: self.src |= regs_of(o)
            return

def vonly(s):
    return {r for r in s if r[0] in ("v", "a")}
def sonly(s):
    return {r for r in s if r[0] == "s"}

def need(p, c):
    n = 0
    if p.kind == "valu":
        pv = vonly(p.dst); ps = sonly(p.dst)
        isdot = p.op.startswith("v_dot")
        if c.kind == "mfma" and pv & c.src: n = max(n, 3 if isdot else 2)
        if c.kind == "valu":
            if c.op.startswith("v_permlane") and pv & c.src: n = max(n, 2)
            if "dpp" in c.raw and pv & c.src: n = max(n, 2)
            if c.op in ("v_readfirstlane_b32", "v_readlane_b32") and pv & c.src: n = max(n, 1)
            if p.op in TRANS and pv & c.src: n = max(n, 1)
            if ps & c.src: n = max(n, 4 if c.op in ("v_readlane_b32", "v_writelane_b32") else 2)
            if isdot and pv & (c.src | c.dst):
                if c.op == p.op and not (pv & (regs_of(c.ops[1]) | regs_of(c.ops[2]))): pass
                else: n = max(n, 3)
            if "op_sel" in p.raw and not p.op.startswith("v_pk") and not isdot and pv & (c.src | c.dst): n = max(n, 1)
        if c.kind in ("vmem", "ds"):
            if c.kind == "vmem" and ps & c.src: n = max(n, 5)
            if isdot and pv & c.src: n = max(n, 3)
            if p.op in TRANS and pv & c.src: n = max(n, 1)
        if ("exec", 0) in p.dst:
            if c.kind == "mfma" or c.op.startswith(("v_permlane", "v_readfirstlane", "v_readlane", "v_writelane")): n = max(n, 4)
            if "dpp" in c.raw: n = max(n, 5)
    if p.kind == "mfma":
        big = 12 if p.passes == 8 else 8
        if c.kind in ("valu", "vmem", "ds") and p.dst & (c.src | c.dst): n = max(n, big)
        if c.kind == "mfma":
            if p.dst & c.srcAB: n = max(n, big)
            if p.dst & c.srcC and not (c.cstr == p.dstr and c.passes == p.passes): n = max(n, big - 2)
            if p.dst & c.dst and not (p.dst & c.srcC): n = max(n, big)
        if c.kind == "valu" and p.srcC & c.dst: n = max(n, 7 if p.passes == 8 else 3)
    if p.kind == "salu" and ("m0", 0) in p.dst and ("m0", 0) in c.src and c.kind == "vmem": n = max(n, 1)
    if p.kind == "vmem" and p.data and (p.data & c.dst): n = max(n, 2 if c.kind == "valu" else 1)
    return n

def pad_hazards(lines):
    out = []
    hist = []
    for text in lines:
        c = Ins(text)
        if c.kind in ("none", "label"):
            out.append(text); continue
        req = 0
        dist = 0
        for p in reversed(hist):
            r = need(p, c) - dist
            if r > req: req = r
            dist += p.states
            if dist > 14: break
        if req > 0:
            nop = Ins(f"s_nop {req-1}")
            out.append(f"  s_nop {req-1}")
            hist.append(nop)
        out.append(text)
        hist.append(c)
        if len(hist) > 40: hist = hist[-20:]
    return out

class Prog:
    def __init__(self):
        self.lines = []
        self.vm = 0
        self.lg = 0
        self.uid = 0
    def __call__(self, text):
        for l in text.strip("\n").split("\n"):
            l = l.strip()
            if not l: continue
            op = l.split()[0]
            if op.startswith(("buffer_", "global_")): self.vm += 1
            if op.startswith("ds_"): self.lg += 1
            self.lines.append(l if l.endswith(":") else "  " + l)
        return self
    def label(self, base):
        self.uid += 1
        return f"L{base}_{self.uid}"
    def vmtag(self): return self.vm
    def lgtag(self): return self.lg
    def wait_vm(self, tag):
        n = self.vm - tag
        assert n >= 0
        self(f"s_waitcnt vmcnt({min(n,63)})")
    def wait_lg(self, tag):
        n = self.lg - tag
        assert n >= 0
        self(f"s_waitcnt lgkmcnt({min(n,15)})")
    def text(self):
        return "\n".join(pad_hazards(self.lines))
```

```python
import sys
sys.path.insert(0, "gen")
from asmlib import *
NAME = "recurrent_scan__linear_attn_block__dense_activation_squared_relu__prompt"

WS_H = 0
WS_PQ = 0x700000
WS_KVP = 0x8C0000
WS_KVF = 0x9C0000
WS_FLG = 0x9D0000
WS_SIZE = 0xA00000
LOG2E = 0x3FB8AA3B

def vr(a, n=1):
    return f"v{a}" if n == 1 else f"v[{a}:{a+n-1}]"
def ar(a, n=1):
    return f"a{a}" if n == 1 else f"a[{a}:{a+n-1}]"
def sr(a, n=1):
    return f"s{a}" if n == 1 else f"s[{a}:{a+n-1}]"

S_X, S_W, S_WS, S_B = 4, 8, 12, 16
S_WQKV, S_W1 = 20, 22
S_WOFF, S_WSTEP = 26, 27
S_NB, S_NREC, S_NOFF, S_NSTEP, S_NBREC, S_NBOFF = 28, 30, 31, 32, 33, 34
S_WBLK, S_R, S_J, S_P, S_CUR, S_NXT = 35, 36, 37, 38, 39, 40
S_RET, S_PASS = 42, 44
S_ONES, S_LO1, S_HI1 = 46, 47, 48
S_ST, S_T0, S_T1, S_T2, S_T3 = 49, 50, 51, 52, 53
S_MEV, S_MOD = 60, 62
S_WV = 64
V_L, V_AW0, V_AW1, V_WOFF, V_NOFF = 1, 2, 3, 4, 5
V_AW2, V_AW3 = 14, 15
WREG = 40960
V_RS, V_RSL, V_L16 = 6, 8, 9
V_ROW, V_T, V_P16, V_BO = 10, 11, 12, 13
V_XA = 16
V_B0, V_B1 = 20, 24
V_ACC = 32
V_RING = 64
V_TMP = 96
V_X = 144

def pass_waits(extra_b=None):
    res = {}
    for ctx in ("first", "kv", "qh"):
        seq = []
        if ctx == "first":
            seq += [("W", 0, u) for u in range(13)]
        else:
            seq += [("W", -1, 13), ("W", 0, 0), ("b",), ("b",)]
            for v in range(2, 8):
                seq += [("W", 0, 2 * v - 3), ("W", 0, 2 * v - 2)]
            seq += [("st",)] * (1 if ctx == "kv" else 4)
        for v in range(1, 8):
            tgt = ("W", 0, 2 * v + 1) if v < 7 else ("W", 1, 1)
            n = len(seq) - 1 - seq.index(tgt)
            res[v] = min(res.get(v, 99), n)
            if v == 1:
                seq += [("W", 0, 13), ("W", 1, 0), ("b",), ("b",)]
            else:
                seq += [("W", 1, 2 * v - 3), ("W", 1, 2 * v - 2)]
    return res

def w_reads(p, e, half):
    st = V_RING + 8 * (e % 4)
    ee = e % 28
    off = (ee >> 1) * 1024
    a = (V_AW0, V_AW1, V_AW2, V_AW3)[half + 2 * (ee & 1)]
    p(f"ds_read_b64_tr_b16 {vr(st+4*half,2)}, {vr(a)} offset:{off}")
    p(f"ds_read_b64_tr_b16 {vr(st+4*half+2,2)}, {vr(a)} offset:{off+512}")

def w_dma(p, u):
    p(f"s_add_u32 m0, {sr(S_WBLK)}, {u*1024}")
    p(f"s_add_u32 {sr(S_WOFF)}, {sr(S_WOFF)}, {sr(S_WSTEP)}")
    p(f"buffer_load_dwordx4 {vr(V_WOFF)}, {sr(S_W,4)}, {sr(S_WOFF)} offen lds")

def gen_pass(p, lab):
    N = pass_waits()
    p(f"{lab}:")
    p("s_nop 1")
    p(f"v_mfma_f32_32x32x16_bf16 {vr(V_ACC,16)}, {vr(V_B0,4)}, {vr(V_XA,4)}, 0")
    p(f"v_mfma_f32_32x32x16_bf16 {vr(V_ACC+16,16)}, {vr(V_B1,4)}, {vr(V_XA,4)}, 0")
    for e in range(28):
        st = V_RING + 8 * (e % 4)
        p("s_waitcnt lgkmcnt(8)")
        p(f"v_mfma_f32_32x32x16_bf16 {vr(V_ACC,16)}, {vr(st,4)}, {vr(V_X+4*e,4)}, {vr(V_ACC,16)}")
        if e % 4 == 1:
            v = (e + 3) // 4
            p(f"s_waitcnt vmcnt({N[v]})")
            p("s_barrier")
            if v == 1:
                w_dma(p, 13)
                p(f"s_mov_b64 {sr(S_W,2)}, {sr(S_NB,2)}")
                p(f"s_mov_b32 {sr(S_W+2)}, {sr(S_NREC)}")
                p(f"s_sub_u32 {sr(S_WOFF)}, {sr(S_NOFF)}, {sr(S_NSTEP)}")
                p(f"s_mov_b32 {sr(S_WSTEP)}, {sr(S_NSTEP)}")
                p(f"s_mov_b32 {sr(S_B+2)}, {sr(S_NBREC)}")
                p(f"v_mov_b32 {vr(V_WOFF)}, {vr(V_NOFF)}")
                w_dma(p, 0)
                p(f"buffer_load_ushort {vr(V_B0)}, {vr(V_BO)}, {sr(S_B,4)}, {sr(S_NBOFF)} offen")
                p(f"buffer_load_ushort {vr(V_B1)}, {vr(V_BO)}, {sr(S_B,4)}, {sr(S_NBOFF)} offen offset:64")
            else:
                w_dma(p, 2 * v - 3)
                w_dma(p, 2 * v - 2)
        w_reads(p, e + 3, 0)
        p(f"v_mfma_f32_32x32x16_bf16 {vr(V_ACC+16,16)}, {vr(st+4,4)}, {vr(V_X+4*e,4)}, {vr(V_ACC+16,16)}")
        w_reads(p, e + 3, 1)
    p(f"s_setpc_b64 {sr(S_RET,2)}")

def phi_pair(p, acc, out, t):
    p(f"v_pk_mul_f32 {vr(t,2)}, {vr(acc,2)}, {vr(V_RSL,2)} op_sel_hi:[1,0]")
    p(f"v_pk_fma_f32 {vr(t+2,2)}, {vr(acc,2)}, {vr(V_RS,2)}, {sr(S_T2,2)}")
    p(f"v_exp_f32 {vr(t)}, {vr(t)} clamp")
    p(f"v_exp_f32 {vr(t+1)}, {vr(t+1)} clamp")
    p(f"v_max_f32 {vr(t+2)}, {sr(S_T2)}, {vr(t+2)}")
    p(f"v_max_f32 {vr(t+3)}, {sr(S_T2)}, {vr(t+3)}")
    p(f"v_pk_add_f32 {vr(t,2)}, {vr(t,2)}, {vr(t+2,2)}")
    p(f"v_cvt_pk_bf16_f32 {vr(out)}, {vr(t)}, {vr(t+1)}")

def gen_k1(p):
    O = V_TMP
    T = V_TMP + 16
    p(f"""
    s_cmp_ge_u32 s2, 256
    s_cbranch_scc1 K1_END
    s_load_dwordx4 s[52:55], s[0:1], 0
    s_load_dwordx4 s[56:59], s[0:1], 32
    s_load_dwordx2 {sr(S_WS,2)}, s[0:1], 80
    v_and_b32 {vr(V_L)}, 63, v0
    v_lshrrev_b32 v108, 6, v0
    v_lshrrev_b32 v109, 3, {vr(V_L)}
    v_readfirstlane_b32 {sr(S_WV)}, v108
    v_and_b32 v28, 7, {vr(V_L)}
    v_lshrrev_b32 v29, 4, {vr(V_L)}
    v_xor_b32 v30, v28, v29
    v_lshlrev_b32 v30, 4, v30
    v_mov_b32 v31, 896
    v_mad_u32_u24 v96, v109, v31, v30
    v_xor_b32 v97, 64, v96
    v_add_u32 v98, 14336, v96
    v_add_u32 v99, 21504, v97
    v_add_u32 v97, 7168, v97
    s_and_b32 {sr(S_T0)}, s2, 7
    s_lshr_b32 {sr(S_T1)}, s2, 3
    s_and_b32 {sr(S_R)}, {sr(S_T0)}, 1
    s_lshl_b32 {sr(S_R)}, {sr(S_R)}, 3
    s_and_b32 {sr(S_J)}, {sr(S_T1)}, 7
    s_add_u32 {sr(S_R)}, {sr(S_R)}, {sr(S_J)}
    s_lshr_b32 {sr(S_T0)}, {sr(S_T0)}, 1
    s_lshl_b32 {sr(S_T0)}, {sr(S_T0)}, 2
    s_lshr_b32 {sr(S_J)}, {sr(S_T1)}, 3
    s_add_u32 {sr(S_J)}, {sr(S_J)}, {sr(S_T0)}
    s_mul_i32 {sr(S_WBLK)}, {sr(S_WV)}, {WREG}
    s_lshl_b32 {sr(S_T0)}, {sr(S_R)}, 2
    s_add_u32 {sr(S_T0)}, {sr(S_T0)}, {sr(S_WV)}
    s_mul_i32 {sr(S_T1)}, {sr(S_T0)}, 28672
    s_mov_b32 {sr(S_X+2)}, 1835008
    s_mov_b32 {sr(S_X+3)}, 0x00020000
    s_mov_b32 {sr(S_W+3)}, 0x00020000
    s_mov_b32 {sr(S_WS+2)}, {WS_SIZE}
    s_mov_b32 {sr(S_WS+3)}, 0x00020000
    s_mov_b32 {sr(S_B+3)}, 0x00020000
    s_waitcnt lgkmcnt(0)
    s_mov_b64 {sr(S_X,2)}, s[52:53]
    s_mov_b64 {sr(S_WQKV,2)}, s[54:55]
    s_mov_b64 {sr(S_W1,2)}, s[56:57]
    s_mov_b64 {sr(S_B,2)}, s[58:59]
    """)
    xt = []
    for v in range(7):
        for q in range(4):
            p(f"s_add_u32 m0, {sr(S_WBLK)}, {(12+4*v+q)*1024 - 128*v}")
            p(f"buffer_load_dwordx4 {vr(96+q)}, {sr(S_X,4)}, {sr(S_T1)} offen offset:{128*v} lds")
        xt.append(p.vmtag())
    p(f"""
    v_lshl_add_u32 {vr(V_ROW)}, {sr(S_WV)}, 3, v109
    v_lshrrev_b32 {vr(V_T)}, 2, v28
    v_and_b32 v30, 1, v29
    v_xor_b32 {vr(V_T)}, {vr(V_T)}, v30
    v_and_b32 {vr(V_P16)}, 3, v28
    v_lshlrev_b32 {vr(V_P16)}, 4, {vr(V_P16)}
    s_movk_i32 {sr(S_T0)}, 2688
    s_movk_i32 {sr(S_T1)}, 896
    v_mad_u32_u24 {vr(V_WOFF)}, {vr(V_ROW)}, {sr(S_T0)}, {vr(V_P16)}
    v_mad_u32_u24 {vr(V_WOFF)}, {vr(V_T)}, {sr(S_T1)}, {vr(V_WOFF)}
    s_mov_b64 {sr(S_W,2)}, {sr(S_WQKV,2)}
    s_mov_b32 {sr(S_W+2)}, 1204224
    s_mul_i32 {sr(S_WOFF)}, {sr(S_J)}, 56
    s_and_b32 {sr(S_T0)}, {sr(S_J)}, 1
    s_lshl_b32 {sr(S_T0)}, {sr(S_T0)}, 3
    s_sub_u32 {sr(S_WOFF)}, {sr(S_WOFF)}, {sr(S_T0)}
    s_sub_u32 {sr(S_WOFF)}, {sr(S_WOFF)}, {32*2688-896}
    s_mov_b32 {sr(S_WSTEP)}, {32*2688}
    """)
    wt = []
    for u in range(12):
        w_dma(p, u)
        wt.append(p.vmtag())
    p(f"""
    v_lshrrev_b32 v30, 5, {vr(V_L)}
    v_bfe_u32 v31, {vr(V_L)}, 2, 2
    v_mul_u32_u24 {vr(V_AW0)}, {WREG}, v30
    v_lshl_add_u32 {vr(V_AW0)}, v31, 7, {vr(V_AW0)}
    v_bfe_u32 v31, {vr(V_L)}, 3, 1
    v_lshl_add_u32 {vr(V_AW0)}, v31, 6, {vr(V_AW0)}
    v_bfe_u32 v31, {vr(V_L)}, 4, 1
    v_lshl_add_u32 {vr(V_AW0)}, v31, 5, {vr(V_AW0)}
    v_and_b32 v31, 3, {vr(V_L)}
    v_lshl_add_u32 {vr(V_AW0)}, v31, 3, {vr(V_AW0)}
    v_xor_b32 {vr(V_AW1)}, 64, {vr(V_AW0)}
    v_add_u32 {vr(V_AW2)}, {2*WREG}, {vr(V_AW0)}
    v_add_u32 {vr(V_AW3)}, {2*WREG}, {vr(V_AW1)}
    v_bfe_u32 v31, {vr(V_L)}, 1, 3
    v_xor_b32 v31, v31, v30
    v_lshlrev_b32 v100, 4, v31
    v_lshl_add_u32 v100, v28, 7, v100
    v_bfe_u32 v31, {vr(V_L)}, 3, 2
    v_lshl_add_u32 v100, v31, 10, v100
    s_add_u32 {sr(S_T0)}, {sr(S_WBLK)}, {12*1024}
    v_add_u32 v100, {sr(S_T0)}, v100
    v_xor_b32 v101, 32, v100
    v_xor_b32 v102, 64, v100
    v_xor_b32 v103, 96, v100
    v_lshlrev_b32 {vr(V_L16)}, 4, {vr(V_L)}
    v_and_b32 {vr(V_BO)}, 31, {vr(V_L)}
    v_lshlrev_b32 {vr(V_BO)}, 1, {vr(V_BO)}
    s_mov_b32 {sr(S_ONES)}, 0x3f803f80
    s_mov_b32 {sr(S_LO1)}, 0x00003f80
    s_mov_b32 {sr(S_HI1)}, 0x3f800000
    v_mov_b32 v104, 0
    v_mov_b32 v105, 0
    v_mov_b32 v106, 0
    v_mov_b32 v107, 0
    """)
    for i in range(V_XA, V_B1 + 4):
        p(f"v_mov_b32 {vr(i)}, 0")
    def stats(v):
        for i in range(16):
            x = V_X + 16 * v + i
            p(f"v_dot2c_f32_bf16 {vr(104+(i&1))}, {sr(S_ONES)}, {vr(x)}")
            p(f"v_dot2c_f32_bf16 {vr(106+(i&1))}, {vr(x)}, {vr(x)}")
    lt = []
    for v in range(7):
        p.wait_vm(xt[v])
        for k in range(4):
            p(f"ds_read_b128 {vr(V_X+16*v+4*k,4)}, {vr(100+k)} offset:{v*4096}")
        lt.append(p.lgtag())
        if v >= 1:
            p.wait_lg(lt[v - 1])
            if v == 1:
                w_dma(p, 12)
            stats(v - 1)
    p.wait_lg(lt[6])
    stats(6)
    p(f"""
    v_add_f32 v104, v104, v105
    v_add_f32 v106, v106, v107
    v_mov_b32 v105, v104
    v_mov_b32 v107, v106
    v_permlane32_swap_b32 v104, v105
    v_permlane32_swap_b32 v106, v107
    v_add_f32 v104, v104, v105
    v_add_f32 v106, v106, v107
    v_mul_f32 v104, 0x3b124925, v104
    v_mul_f32 v106, 0x3b124925, v106
    v_fma_f32 v106, -v104, v104, v106
    v_max_f32 v106, 0, v106
    v_cvt_pk_bf16_f32 v105, v104, v106
    v_and_b32 v106, 0xffff0000, v105
    v_lshlrev_b32 v104, 16, v105
    v_add_f32 v106, 0x3727c5ac, v106
    v_cvt_pk_bf16_f32 v106, v106, v106
    v_and_b32 v106, 0xffff0000, v106
    v_sqrt_f32 v106, v106
    v_xor_b32 v104, 0x80000000, v104
    v_cvt_pk_bf16_f32 v106, v106, v106
    v_and_b32 v107, 0xffff0000, v106
    v_rcp_f32 {vr(V_RS)}, v107
    v_and_b32 v106, 0xffff, v106
    v_cmp_gt_u32 vcc, 32, {vr(V_L)}
    v_mov_b32 {vr(V_RS+1)}, {vr(V_RS)}
    v_mul_f32 {vr(V_RSL)}, {hex(LOG2E)}, {vr(V_RS)}
    v_cndmask_b32 {vr(V_XA)}, 0, v106, vcc
    """)
    for i in range(0, 112, 4):
        for k in range(4):
            x = V_X + i + k
            p(f"v_dot2_f32_bf16 {vr(108+2*k)}, {vr(x)}, {sr(S_LO1)}, v104")
            p(f"v_dot2_f32_bf16 {vr(109+2*k)}, {vr(x)}, {sr(S_HI1)}, v104")
        for k in range(4):
            x = V_X + i + k
            p(f"v_cvt_pk_bf16_f32 {vr(x)}, {vr(108+2*k)}, {vr(109+2*k)}")
    p.wait_vm(wt[1])
    p("s_barrier")
    for e in range(3):
        w_reads(p, e, 0); w_reads(p, e, 1)
    p(f"""
    s_getpc_b64 {sr(S_PASS,2)}
    K1_PC:
    s_add_u32 {sr(S_PASS)}, {sr(S_PASS)}, K1_PASS-K1_PC
    s_addc_u32 {sr(S_PASS+1)}, {sr(S_PASS+1)}, 0
    s_mov_b32 {sr(S_CUR)}, -1
    s_mov_b32 {sr(S_NXT)}, {sr(S_J)}
    s_mov_b32 {sr(S_T2)}, 0x358637bd
    s_mov_b32 {sr(S_T3)}, 0x358637bd
    K1_LOOP:
    s_cmp_lt_u32 {sr(S_NXT)}, 7
    s_cbranch_scc0 K1_NH
    s_mov_b64 {sr(S_NB,2)}, {sr(S_WQKV,2)}
    s_mov_b32 {sr(S_NREC)}, 1204224
    s_lshl_b32 {sr(S_NOFF)}, {sr(S_NXT)}, 7
    s_movk_i32 {sr(S_T0)}, 2688
    s_mov_b32 {sr(S_NBREC)}, 0
    s_mov_b32 {sr(S_NBOFF)}, 0
    s_branch K1_NJ
    K1_NH:
    s_mov_b64 {sr(S_NB,2)}, {sr(S_W1,2)}
    s_cmp_lt_u32 {sr(S_NXT)}, 35
    s_cselect_b32 {sr(S_NREC)}, 1605632, 0
    s_cselect_b32 {sr(S_NBREC)}, 3584, 0
    s_sub_u32 {sr(S_NOFF)}, {sr(S_NXT)}, 7
    s_lshl_b32 {sr(S_NOFF)}, {sr(S_NOFF)}, 7
    s_mov_b32 {sr(S_NBOFF)}, {sr(S_NOFF)}
    s_movk_i32 {sr(S_T0)}, 3584
    K1_NJ:
    s_lshl_b32 {sr(S_NSTEP)}, {sr(S_T0)}, 5
    v_mad_u32_u24 {vr(V_NOFF)}, {vr(V_ROW)}, {sr(S_T0)}, {vr(V_P16)}
    v_lshl_add_u32 {vr(V_NOFF)}, {vr(V_T)}, 6, {vr(V_NOFF)}
    s_swappc_b64 {sr(S_RET,2)}, {sr(S_PASS,2)}
    s_lshl_b32 {sr(S_T0)}, {sr(S_R)}, 2
    s_add_u32 {sr(S_T0)}, {sr(S_T0)}, {sr(S_WV)}
    s_cmp_lt_i32 {sr(S_CUR)}, 0
    s_cbranch_scc1 K1_EKV
    s_cmp_lt_u32 {sr(S_CUR)}, 7
    s_cbranch_scc1 K1_EQ
    s_mul_i32 {sr(S_ST)}, {sr(S_T0)}, {112*1024}
    s_sub_u32 {sr(S_T1)}, {sr(S_CUR)}, 7
    s_lshl_b32 {sr(S_T1)}, {sr(S_T1)}, 12
    s_add_u32 {sr(S_ST)}, {sr(S_ST)}, {sr(S_T1)}
    s_nop 4
    """)
    for i in range(16):
        a = V_ACC + 2 * i
        t = T + 2 * (i % 4)
        p(f"v_pk_mul_f32 {vr(t,2)}, {vr(a,2)}, {vr(V_RS,2)}")
        p(f"v_max_f32 {vr(t)}, 0, {vr(t)}")
        p(f"v_max_f32 {vr(t+1)}, 0, {vr(t+1)}")
        p(f"v_pk_mul_f32 {vr(t,2)}, {vr(t,2)}, {vr(t,2)}")
        p(f"v_cvt_pk_bf16_f32 {vr(O+i)}, {vr(t)}, {vr(t+1)}")
    p("s_branch K1_ST")
    p(f"""
    K1_EQ:
    s_mul_i32 {sr(S_ST)}, {sr(S_T0)}, {56*512}
    s_lshl_b32 {sr(S_T1)}, {sr(S_CUR)}, 12
    s_add_u32 {sr(S_ST)}, {sr(S_ST)}, {sr(S_T1)}
    s_add_u32 {sr(S_ST)}, {sr(S_ST)}, {WS_PQ}
    s_nop 4
    """)
    for i in range(16):
        phi_pair(p, V_ACC + 2 * i, O + i, T + 4 * (i % 4))
    for q in range(4):
        p(f"v_permlane32_swap_b32 {vr(O+4*q)}, {vr(O+4*q+2)}")
        p(f"v_permlane32_swap_b32 {vr(O+4*q+1)}, {vr(O+4*q+3)}")
    p("K1_ST:")
    for q in range(4):
        p(f"buffer_store_dwordx4 {vr(O+4*q,4)}, {vr(V_L16)}, {sr(S_WS,4)}, {sr(S_ST)} offen offset:{q*1024}")
    p("s_branch K1_NEXT")
    SCR = 14 * 1024
    p(f"""
    K1_EKV:
    s_and_b32 {sr(S_T1)}, {sr(S_J)}, 1
    s_sub_u32 {sr(S_MEV+1)}, {sr(S_T1)}, 1
    s_mov_b32 {sr(S_MEV)}, 0
    s_sub_u32 {sr(S_MOD)}, 0, {sr(S_T1)}
    s_mov_b32 {sr(S_MOD+1)}, 0
    v_and_b32 v28, 31, {vr(V_L)}
    v_and_b32 v29, 7, {vr(V_L)}
    v_lshlrev_b32 v28, 7, v28
    v_lshl_add_u32 v28, v29, 4, v28
    v_lshrrev_b32 v29, 5, {vr(V_L)}
    v_lshl_add_u32 v28, v29, 3, v28
    s_add_u32 {sr(S_T1)}, {sr(S_WBLK)}, {SCR}
    v_add_u32 v28, {sr(S_T1)}, v28
    """)
    for i in range(8):
        phi_pair(p, V_ACC + 2 * i, O + i, T + 4 * (i % 4))
    for i in range(8):
        t = T + 2 * (i % 4)
        p(f"v_pk_mul_f32 {vr(t,2)}, {vr(V_ACC+16+2*i,2)}, {vr(V_RS,2)}")
        if i == 0:
            p(f"v_cndmask_b32 {vr(t)}, {vr(t)}, 1.0, {sr(S_MOD,2)}")
        if i == 6:
            p(f"v_cndmask_b32 {vr(t)}, {vr(t)}, 1.0, {sr(S_MEV,2)}")
        p(f"v_cvt_pk_bf16_f32 {vr(O+8+i)}, {vr(t)}, {vr(t+1)}")
    for c in range(8):
        p(f"v_xor_b32 {vr(T+c)}, {c*16}, v28")
        p(f"ds_write_b64 {vr(T+c)}, {vr(O+2*c,2)}")
    p(f"""
    v_lshrrev_b32 v28, 4, {vr(V_L)}
    v_bfe_u32 v29, {vr(V_L)}, 2, 2
    v_lshl_add_u32 v28, v28, 3, v29
    v_lshlrev_b32 v28, 7, v28
    v_bfe_u32 v30, {vr(V_L)}, 1, 1
    v_xor_b32 v29, v29, v30
    v_lshl_add_u32 v28, v29, 4, v28
    v_and_b32 v30, 1, {vr(V_L)}
    v_lshl_add_u32 v28, v30, 3, v28
    v_add_u32 v28, {SCR}, v28
    s_and_b32 {sr(S_T1)}, {sr(S_WV)}, 1
    s_lshl_b32 {sr(S_T1)}, {sr(S_T1)}, 5
    v_xor_b32 v29, {sr(S_T1)}, v28
    s_lshr_b32 {sr(S_T1)}, {sr(S_WV)}, 1
    s_lshl_b32 {sr(S_T1)}, {sr(S_T1)}, 5
    s_add_u32 {sr(S_T1)}, {sr(S_T1)}, 64
    v_xor_b32 v30, {sr(S_T1)}, v28
    v_xor_b32 v28, 64, v29
    v_xor_b32 v31, 64, v30
    s_lshl_b32 {sr(S_ST)}, {sr(S_J)}, 4
    s_add_u32 {sr(S_ST)}, {sr(S_ST)}, {sr(S_R)}
    s_lshl_b32 {sr(S_ST)}, {sr(S_ST)}, 12
    s_lshl_b32 {sr(S_T1)}, {sr(S_WV)}, 10
    s_add_u32 {sr(S_ST)}, {sr(S_ST)}, {sr(S_T1)}
    s_add_u32 {sr(S_ST)}, {sr(S_ST)}, {WS_KVP}
    v_add_u32 v136, {2*WREG}, v29
    v_add_u32 v137, {2*WREG}, v28
    v_add_u32 v138, {2*WREG}, v30
    v_add_u32 v139, {2*WREG}, v31
    s_waitcnt lgkmcnt(0)
    s_barrier
    """)
    F = V_TMP
    tg = []
    for m in range(4):
        aa = (29, 28, 30, 31) if m < 2 else (136, 137, 138, 139)
        o = (m & 1) * WREG
        p(f"ds_read_b64_tr_b16 {vr(F+8*m,2)}, v{aa[0]} offset:{o}")
        p(f"ds_read_b64_tr_b16 {vr(F+8*m+2,2)}, v{aa[1]} offset:{o+512}")
        p(f"ds_read_b64_tr_b16 {vr(F+8*m+4,2)}, v{aa[2]} offset:{o}")
        p(f"ds_read_b64_tr_b16 {vr(F+8*m+6,2)}, v{aa[3]} offset:{o+512}")
        tg.append(p.lgtag())
    D = V_TMP + 32
    for m in range(4):
        p.wait_lg(tg[m])
        c = "0" if m == 0 else vr(D, 4)
        p(f"v_mfma_f32_16x16x32_bf16 {vr(D,4)}, {vr(F+8*m,4)}, {vr(F+8*m+4,4)}, {c}")
    p(f"buffer_store_dwordx4 {vr(D,4)}, {vr(V_L16)}, {sr(S_WS,4)}, {sr(S_ST)} offen")
    p(f"""
    K1_NEXT:
    s_mov_b32 {sr(S_CUR)}, {sr(S_NXT)}
    s_add_u32 {sr(S_NXT)}, {sr(S_NXT)}, 16
    s_cmp_lt_u32 {sr(S_CUR)}, 35
    s_cbranch_scc1 K1_LOOP
    K1_END:
    s_endpgm
    """)
    gen_pass(p, "K1_PASS")

def gen_kred(p):
    p(f"""
    s_cmp_ge_u32 s2, 32
    s_cbranch_scc1 KR_END
    s_load_dwordx2 s[12:13], s[0:1], 80
    s_mov_b32 s14, {WS_SIZE}
    s_mov_b32 s15, 0x00020000
    v_bfe_u32 v1, v0, 4, 1
    v_lshrrev_b32 v2, 5, v0
    v_and_b32 v3, 15, v0
    v_lshlrev_b32 v1, 11, v1
    v_lshl_add_u32 v1, v2, 9, v1
    v_lshl_add_u32 v1, v3, 4, v1
    v_lshlrev_b32 v2, 4, v0
    s_lshr_b32 s4, s2, 1
    s_and_b32 s5, s2, 1
    s_lshl_b32 s6, s4, 16
    s_lshl_b32 s7, s5, 10
    s_add_u32 s6, s6, s7
    s_add_u32 s6, s6, {WS_KVP}
    s_lshl_b32 s7, s2, 10
    s_add_u32 s7, s7, {WS_KVF}
    s_and_b32 s4, s4, 1
    s_cmp_eq_u32 s4, 0
    s_cselect_b32 s20, 0x1fffffff, 0xfffffff1
    s_mov_b32 s21, s20
    s_mov_b32 s22, s20
    s_mov_b32 s23, s20
    s_lshl_b32 s8, s4, 1
    s_or_b32 s8, s8, s5
    s_cmp_eq_u32 s8, 2
    s_cselect_b32 s20, 0, s20
    s_cmp_eq_u32 s8, 1
    s_cselect_b32 s23, 0, s23
    s_waitcnt lgkmcnt(0)
    """)
    tg = []
    for r in range(16):
        p(f"buffer_load_dwordx4 {vr(8+8*r,4)}, v1, s[12:15], s6 offen")
        p(f"buffer_load_dwordx4 {vr(12+8*r,4)}, v1, s[12:15], s6 offen offset:256")
        p("s_add_u32 s6, s6, 4096")
        tg.append(p.vmtag())
    for r in range(1, 16):
        p.wait_vm(tg[r])
        for k in range(4):
            p(f"v_pk_add_f32 {vr(8+2*k,2)}, {vr(8+2*k,2)}, {vr(8+8*r+2*k,2)}")
    for k in range(8):
        p(f"v_cndmask_b32 {vr(8+k)}, 0, {vr(8+k)}, {'s[20:21]' if k < 4 else 's[22:23]'}")
    for k in range(4):
        p(f"v_cvt_pk_bf16_f32 {vr(4+k)}, {vr(8+2*k)}, {vr(9+2*k)}")
    p(f"""
    buffer_store_dwordx4 v[4:7], v2, s[12:15], s7 offen
    KR_END:
    s_endpgm
    """)

def gen_k2(p):
    S_X, S_W2, S_WS, S_WO, S_OUT, S_B2 = 4, 8, 12, 16, 20, 24
    S_WV, S_WBLK, S_RB, S_CS = 28, 29, 30, 31
    S_H0, S_H1, S_W2O, S_T0, S_T1, S_T2, S_XO = 32, 33, 34, 35, 36, 37, 38
    S_MLO, S_MHI = 40, 42
    V_L, V_A0, V_A1, V_WOFF, V_L16, V_RW, V_RR, V_XO = 1, 2, 3, 4, 5, 6, 7, 8
    V_XD, V_B2 = 12, 20
    ACC, PQ, KV, OT, OB, WOF = 32, 96, 160, 192, 224, 240
    TM = 24
    p(f"""
    s_cmp_ge_u32 s2, 224
    s_cbranch_scc1 K2_END
    s_load_dwordx2 {sr(S_X,2)}, s[0:1], 0
    s_load_dwordx2 {sr(S_WO,2)}, s[0:1], 16
    s_load_dwordx4 s[44:47], s[0:1], 48
    s_load_dwordx2 {sr(S_OUT,2)}, s[0:1], 64
    s_load_dwordx2 {sr(S_WS,2)}, s[0:1], 80
    v_and_b32 {vr(V_L)}, 63, v0
    v_lshrrev_b32 v24, 6, v0
    v_lshrrev_b32 v25, 3, {vr(V_L)}
    v_readfirstlane_b32 {sr(S_WV)}, v24
    v_and_b32 v26, 7, {vr(V_L)}
    v_bfe_u32 v27, {vr(V_L)}, 4, 1
    v_lshlrev_b32 v27, 2, v27
    v_xor_b32 v27, v27, v26
    v_lshlrev_b32 v27, 4, v27
    v_mov_b32 v28, 896
    v_mad_u32_u24 {vr(V_WOFF)}, v25, v28, v27
    v_lshlrev_b32 v27, 4, v26
    v_mad_u32_u24 {vr(V_XO)}, v25, v28, v27
    v_lshlrev_b32 {vr(V_L16)}, 4, {vr(V_L)}
    s_and_b32 {sr(S_T0)}, s2, 7
    s_lshr_b32 {sr(S_T1)}, s2, 3
    s_mul_i32 {sr(S_RB)}, {sr(S_T1)}, 37
    s_lshr_b32 {sr(S_RB)}, {sr(S_RB)}, 8
    s_mul_i32 {sr(S_CS)}, {sr(S_RB)}, 7
    s_sub_u32 {sr(S_CS)}, {sr(S_T1)}, {sr(S_CS)}
    s_lshl_b32 {sr(S_T0)}, {sr(S_T0)}, 2
    s_add_u32 {sr(S_RB)}, {sr(S_RB)}, {sr(S_T0)}
    s_mul_i32 {sr(S_WBLK)}, {sr(S_WV)}, {WREG}
    s_mov_b32 {sr(S_X+2)}, 1835008
    s_mov_b32 {sr(S_X+3)}, 0x00020000
    s_mov_b32 {sr(S_W2+2)}, 1605632
    s_mov_b32 {sr(S_W2+3)}, 0x00020000
    s_mov_b32 {sr(S_WS+2)}, {WS_SIZE}
    s_mov_b32 {sr(S_WS+3)}, 0x00020000
    s_mov_b32 {sr(S_WO+2)}, 401408
    s_mov_b32 {sr(S_WO+3)}, 0x00020000
    s_mov_b32 {sr(S_OUT+2)}, 1835008
    s_mov_b32 {sr(S_OUT+3)}, 0x00020000
    s_mov_b32 {sr(S_B2+2)}, 896
    s_mov_b32 {sr(S_B2+3)}, 0x00020000
    s_mov_b32 {sr(S_MLO)}, -1
    s_mov_b32 {sr(S_MLO+1)}, 0
    s_mov_b32 {sr(S_MHI)}, 0
    s_mov_b32 {sr(S_MHI+1)}, -1
    s_lshl_b32 {sr(S_T0)}, {sr(S_WV)}, 13
    s_add_u32 {sr(S_T0)}, {sr(S_T0)}, {WS_KVF}
    s_mul_i32 {sr(S_T1)}, {sr(S_RB)}, {2*56*512}
    s_mul_i32 {sr(S_T2)}, {sr(S_WV)}, {14*512}
    s_add_u32 {sr(S_T1)}, {sr(S_T1)}, {sr(S_T2)}
    s_add_u32 {sr(S_T1)}, {sr(S_T1)}, {WS_PQ}
    s_waitcnt lgkmcnt(0)
    s_mov_b64 {sr(S_W2,2)}, s[44:45]
    s_mov_b64 {sr(S_B2,2)}, s[46:47]
    """)
    P0 = (0, 3, 7, 10)
    htag = []
    for hh in range(4):
        for ks in range(2):
            o = (2 * hh + ks) * 1024
            if o == 4096:
                p(f"s_add_u32 {sr(S_T0)}, {sr(S_T0)}, 4096")
            p(f"buffer_load_dwordx4 {vr(KV+8*hh+4*ks,4)}, {vr(V_L16)}, {sr(S_WS,4)}, {sr(S_T0)} offen offset:{o%4096}")
        for rt in range(2):
            p(f"s_add_u32 {sr(S_T2)}, {sr(S_T1)}, {rt*56*512 + P0[hh]*512}")
            for ks in range(2):
                p(f"buffer_load_dwordx4 {vr(PQ+16*hh+8*rt+4*ks,4)}, {vr(V_L16)}, {sr(S_WS,4)}, {sr(S_T2)} offen offset:{ks*1024}")
        htag.append(p.vmtag())
    p(f"""
    s_mul_i32 {sr(S_T0)}, {sr(S_WV)}, {112*896}
    s_lshl_b32 {sr(S_T1)}, {sr(S_CS)}, 7
    s_add_u32 {sr(S_T0)}, {sr(S_T0)}, {sr(S_T1)}
    s_mul_i32 {sr(S_W2O)}, {sr(S_WV)}, {448*896}
    s_add_u32 {sr(S_W2O)}, {sr(S_W2O)}, {sr(S_T1)}
    s_sub_u32 {sr(S_W2O)}, {sr(S_W2O)}, 7168
    s_mul_i32 {sr(S_H0)}, {sr(S_RB)}, {2*112*1024}
    s_mul_i32 {sr(S_T2)}, {sr(S_WV)}, {28*1024}
    s_add_u32 {sr(S_H0)}, {sr(S_H0)}, {sr(S_T2)}
    s_add_u32 {sr(S_H1)}, {sr(S_H0)}, {112*1024}
    s_lshl_b32 {sr(S_XO)}, {sr(S_RB)}, 2
    s_add_u32 {sr(S_XO)}, {sr(S_XO)}, {sr(S_WV)}
    s_mul_i32 {sr(S_XO)}, {sr(S_XO)}, {16*896}
    s_add_u32 {sr(S_XO)}, {sr(S_XO)}, {sr(S_T1)}
    """)
    wot = []
    for i in range(14):
        p(f"s_add_u32 m0, {sr(S_WBLK)}, {i*1024}")
        p(f"buffer_load_dwordx4 {vr(V_WOFF)}, {sr(S_WO,4)}, {sr(S_T0)} offen lds")
        p(f"s_add_u32 {sr(S_T0)}, {sr(S_T0)}, 7168")
        wot.append(p.vmtag())
    p(f"""
    v_lshrrev_b32 v24, 5, {vr(V_L)}
    v_bfe_u32 v27, {vr(V_L)}, 2, 2
    v_lshl_add_u32 {vr(V_A0)}, v24, 2, v27
    v_lshlrev_b32 {vr(V_A0)}, 7, {vr(V_A0)}
    v_bfe_u32 v27, {vr(V_L)}, 3, 1
    v_lshl_add_u32 {vr(V_A0)}, v27, 6, {vr(V_A0)}
    v_bfe_u32 v27, {vr(V_L)}, 4, 1
    v_lshl_add_u32 {vr(V_A0)}, v27, 5, {vr(V_A0)}
    v_and_b32 v27, 3, {vr(V_L)}
    v_lshl_add_u32 {vr(V_A0)}, v27, 3, {vr(V_A0)}
    v_add_u32 {vr(V_A0)}, {sr(S_WBLK)}, {vr(V_A0)}
    v_xor_b32 {vr(V_A1)}, 64, {vr(V_A0)}
    v_and_b32 v27, 31, {vr(V_L)}
    v_xor_b32 v28, v26, v24
    v_lshlrev_b32 v28, 4, v28
    v_lshl_add_u32 {vr(V_RW)}, v27, 8, v28
    v_add_u32 {vr(V_RW)}, {sr(S_WBLK)}, {vr(V_RW)}
    v_lshlrev_b32 v28, 1, v26
    v_xor_b32 v28, v28, v25
    v_lshlrev_b32 v28, 4, v28
    v_lshl_add_u32 {vr(V_RR)}, v25, 8, v28
    s_lshl_b32 {sr(S_T0)}, {sr(S_WV)}, 12
    v_add_u32 {vr(V_RR)}, {sr(S_T0)}, {vr(V_RR)}
    v_lshlrev_b32 v28, 4, v26
    """)
    st = dict(next=0, waited=0)
    free_regs = [("a", 224 + 8 * i) for i in range(4)]
    free_pc = list(range(16, 40, 2))
    unit = {}
    def rr(kind, a, n):
        return vr(a, n) if kind == "v" else ar(a, n)
    def pump(maxn=99):
        n = 0
        while st["next"] < 28 and free_regs and free_pc and p.vm - st["waited"] <= 58 and n < maxn:
            k = st["next"]; st["next"] += 1; n += 1
            rg = free_regs.pop(0); pc = free_pc.pop(0)
            for t in range(2):
                p(f"s_add_u32 m0, {sr(S_WBLK)}, {(pc+t)*1024}")
                p(f"s_add_u32 {sr(S_W2O)}, {sr(S_W2O)}, 7168")
                p(f"buffer_load_dwordx4 {vr(V_WOFF)}, {sr(S_W2,4)}, {sr(S_W2O)} offen lds")
            wtag = p.vmtag()
            if k % 4 == 0 and k:
                p(f"s_add_u32 {sr(S_H0)}, {sr(S_H0)}, 4096")
                p(f"s_add_u32 {sr(S_H1)}, {sr(S_H1)}, 4096")
            p(f"buffer_load_dwordx4 {rr(rg[0],rg[1],4)}, {vr(V_L16)}, {sr(S_WS,4)}, {sr(S_H0)} offen offset:{(k%4)*1024}")
            p(f"buffer_load_dwordx4 {rr(rg[0],rg[1]+4,4)}, {vr(V_L16)}, {sr(S_WS,4)}, {sr(S_H1)} offen offset:{(k%4)*1024}")
            unit[k] = (rg, pc, wtag, p.vmtag())
    def wvm(tag):
        if tag > st["waited"]:
            p.wait_vm(tag); st["waited"] = tag
    pump()
    for hh in range(4):
        wvm(htag[hh])
        for ks in range(2):
            for rt in range(2):
                c = "0" if ks == 0 else vr(OT + 16 * rt, 16)
                p(f"v_mfma_f32_32x32x16_bf16 {vr(OT+16*rt,16)}, {vr(KV+8*hh+4*ks,4)}, {vr(PQ+16*hh+8*rt+4*ks,4)}, {c}")
        wvm(wot[P0[hh] + 3])
        for q in range(2):
            for ct in range(2):
                for t in range(2):
                    p(f"ds_read_b64_tr_b16 {vr(WOF+8*q+4*ct+2*t,2)}, {vr(V_A0+ct)} offset:{(P0[hh]+2*q+t)*1024}")
        free_regs += [("v", PQ + 16 * hh), ("v", PQ + 16 * hh + 8), ("v", KV + 8 * hh)]
        zi = 0 if hh & 1 else 12
        for rt in range(2):
            o = OT + 16 * rt
            p(f"v_mov_b32 {vr(TM)}, {vr(o+zi)}")
            p(f"v_mov_b32 {vr(TM+1)}, {vr(o+zi)}")
            p(f"v_permlane32_swap_b32 {vr(TM)}, {vr(TM+1)}")
            d = TM if hh & 1 else TM + 1
            p(f"v_add_f32 {vr(TM+2)}, 0x358637bd, {vr(d)}")
            p(f"v_rcp_f32 {vr(TM+2)}, {vr(TM+2)}")
            p(f"v_cndmask_b32 {vr(o+zi)}, {vr(o+zi)}, 0, {sr(S_MLO if hh & 1 else S_MHI,2)}")
            for i in range(8):
                p(f"v_pk_mul_f32 {vr(o+2*i,2)}, {vr(o+2*i,2)}, {vr(TM+2,2)} op_sel_hi:[1,0]")
            for i in range(8):
                p(f"v_cvt_pk_bf16_f32 {vr(OB+8*rt+i)}, {vr(o+2*i)}, {vr(o+2*i+1)}")
        pump()
        p("s_waitcnt lgkmcnt(0)")
        for q in range(2):
            for ct in range(2):
                for rt in range(2):
                    a = ACC + 32 * ct + 16 * rt
                    c = "0" if (hh == 0 and q == 0) else vr(a, 16)
                    p(f"v_mfma_f32_32x32x16_bf16 {vr(a,16)}, {vr(WOF+8*q+4*ct,4)}, {vr(OB+8*rt+4*q,4)}, {c}")
    free_regs += [("v", OT + 8 * i) for i in range(4)] + [("v", OB), ("v", OB + 8)]
    def dump(base):
        for ct in range(2):
            for a in range(4):
                p(f"v_xor_b32 {vr(TM+(a&1))}, {(8*ct+2*a)*16}, {vr(V_RW)}")
                for rt in range(2):
                    p(f"ds_write_b128 {vr(TM+(a&1))}, {vr(ACC+32*ct+16*rt+4*a,4)} offset:{base+rt*8192}")
    pump()
    dump(0)
    free_regs += [("v", WOF), ("v", WOF + 8)]
    def frag_reads(k):
        rg, pc, wtag, _ = unit[k]
        wvm(wtag)
        for ct in range(2):
            for t in range(2):
                p(f"ds_read_b64_tr_b16 {ar(8*k+4*ct+2*t,2)}, {vr(V_A0+ct)} offset:{(pc+t)*1024}")
        return p.lgtag()
    ft = {0: frag_reads(0), 1: frag_reads(1)}
    xtag = None
    for k in range(28):
        rg, pc, wtag, htg = unit[k]
        p.wait_lg(ft[k])
        free_pc.append(pc)
        wvm(htg)
        for ct in range(2):
            for rt in range(2):
                a = ACC + 32 * ct + 16 * rt
                c = "0" if k == 0 else vr(a, 16)
                p(f"v_mfma_f32_32x32x16_bf16 {vr(a,16)}, {ar(8*k+4*ct,4)}, {rr(rg[0],rg[1]+4*rt,4)}, {c}")
                if ct == 0 and rt == 0:
                    pump(1)
                if ct == 0 and rt == 1 and k + 2 < 28:
                    ft[k + 2] = frag_reads(k + 2)
        free_regs.append(rg)
        if st["next"] == 28 and xtag is None:
            p(f"buffer_load_dwordx4 {vr(V_XD,4)}, {vr(V_XO)}, {sr(S_X,4)}, {sr(S_XO)} offen")
            p(f"s_add_u32 {sr(S_T0)}, {sr(S_XO)}, 7168")
            p(f"s_lshl_b32 {sr(S_T1)}, {sr(S_CS)}, 7")
            p(f"buffer_load_dwordx4 {vr(V_XD+4,4)}, {vr(V_XO)}, {sr(S_X,4)}, {sr(S_T0)} offen")
            p(f"buffer_load_dwordx4 {vr(V_B2,4)}, v28, {sr(S_B2,4)}, {sr(S_T1)} offen")
            xtag = p.vmtag()
    dump(16384)
    p("s_waitcnt lgkmcnt(0)")
    p("s_barrier")
    R = 32
    p(f"v_xor_b32 {vr(TM)}, 16, {vr(V_RR)}")
    p(f"v_add_u32 {vr(TM+1)}, {2*WREG}, {vr(V_RR)}")
    p(f"v_add_u32 {vr(TM+2)}, {2*WREG}, {vr(TM)}")
    tg = {}
    for ps in range(2):
        for arr in range(2):
            for sw in range(4):
                for c in range(2):
                    a = (V_RR, TM, TM + 1, TM + 2)[c + 2 * (sw >> 1)]
                    p(f"ds_read_b128 {vr(R+64*ps+32*arr+8*sw+4*c,4)}, {vr(a)} offset:{(sw&1)*WREG + arr*16384 + ps*2048}")
            tg[ps, arr] = p.lgtag()
    B = 160
    X = 168
    E = 176
    wvm(xtag)
    for i in range(4):
        p(f"v_lshlrev_b32 {vr(B+2*i)}, 16, {vr(V_B2+i)}")
        p(f"v_and_b32 {vr(B+2*i+1)}, 0xffff0000, {vr(V_B2+i)}")
    p(f"s_mov_b32 {sr(S_T1)}, {hex(LOG2E | 0x80000000)}")
    p(f"s_mov_b32 s44, 1.0")
    p(f"s_mov_b32 s45, 1.0")
    for ps in range(2):
        for arr in range(2):
            p.wait_lg(tg[ps, arr])
            b = R + 64 * ps + 32 * arr
            for i in range(4):
                p(f"v_pk_add_f32 {vr(b+2*i,2)}, {vr(b+2*i,2)}, {vr(b+8+2*i,2)}")
                p(f"v_pk_add_f32 {vr(b+16+2*i,2)}, {vr(b+16+2*i,2)}, {vr(b+24+2*i,2)}")
            for i in range(4):
                p(f"v_pk_add_f32 {vr(b+2*i,2)}, {vr(b+2*i,2)}, {vr(b+16+2*i,2)}")
        s_ = R + 64 * ps; o_ = s_ + 32
        for i in range(4):
            p(f"v_pk_add_f32 {vr(o_+2*i,2)}, {vr(o_+2*i,2)}, {vr(B+2*i,2)}")
        for i in range(8):
            p(f"v_mul_f32 {vr(E+i)}, {sr(S_T1)}, {vr(o_+i)}")
        for i in range(8):
            p(f"v_exp_f32 {vr(E+i)}, {vr(E+i)}")
        for i in range(4):
            p(f"v_lshlrev_b32 {vr(X+2*i)}, 16, {vr(V_XD+4*ps+i)}")
            p(f"v_and_b32 {vr(X+2*i+1)}, 0xffff0000, {vr(V_XD+4*ps+i)}")
        for i in range(4):
            p(f"v_pk_add_f32 {vr(E+2*i,2)}, {vr(E+2*i,2)}, s[44:45]")
        for i in range(8):
            p(f"v_rcp_f32 {vr(E+i)}, {vr(E+i)}")
        for i in range(4):
            p(f"v_pk_mul_f32 {vr(o_+2*i,2)}, {vr(o_+2*i,2)}, {vr(s_+2*i,2)}")
        for i in range(4):
            p(f"v_pk_fma_f32 {vr(X+2*i,2)}, {vr(o_+2*i,2)}, {vr(E+2*i,2)}, {vr(X+2*i,2)}")
        for i in range(4):
            p(f"v_cvt_pk_bf16_f32 {vr(s_+i)}, {vr(X+2*i)}, {vr(X+2*i+1)}")
        so = sr(S_XO) if ps == 0 else sr(S_T0)
        p(f"buffer_store_dwordx4 {vr(s_,4)}, {vr(V_XO)}, {sr(S_OUT,4)}, {so} offen")
    p("""
    K2_END:
    s_endpgm
    """)

def kernel_block(name, body, vg=512, acc=256):
    txt = f""".globl {name}
.p2align 8
.type {name},@function
{name}:
{body}
"""
    desc = f""".amdhsa_kernel {name}
  .amdhsa_next_free_vgpr {vg}
  .amdhsa_next_free_sgpr 102
  .amdhsa_accum_offset {acc}
  .amdhsa_group_segment_fixed_size 0
  .amdhsa_kernarg_size 88
  .amdhsa_user_sgpr_count 2
  .amdhsa_user_sgpr_kernarg_segment_ptr 1
  .amdhsa_system_sgpr_workgroup_id_x 1
.end_amdhsa_kernel
"""
    return txt, desc

def build(kernels, out):
    hdr = open(f"cdna_kernels/{NAME}.s.ref").read().split("; @launch")[0]
    launch = ""
    txt = ""; desc = ""
    for name, gen, grid, block, lds, vg, acc in kernels:
        if len(kernels) == 1:
            launch += f"; @launch grid=({grid},1,1) block=({block},1,1) lds={lds}\n"
        else:
            launch += f"; @launch kernel={name} grid=({grid},1,1) block=({block},1,1) lds={lds}\n"
        p = Prog(); gen(p)
        t, d = kernel_block(name, p.text(), vg, acc)
        txt += t; desc += ".p2align 6\n" + d
    s = hdr + launch + '.amdgcn_target "amdgcn-amd-amdhsa--gfx950"\n.text\n' + txt + '.section .rodata,"a"\n' + desc
    open(out, "w").write(s)

if __name__ == "__main__":
    build([(NAME + "_kernel", gen_k1, 256, 256, 163840, 256, 256)], "k1.s")
    build([("k1_kernel", gen_k1, 256, 256, 163840, 256, 256), ("kr_kernel", gen_kred, 32, 64, 0, 144, 144),
           ("k2_kernel", gen_k2, 224, 256, 163840, 512, 256)], "v1.s")
```

```python
import sys
sys.path.insert(0, "gen")
from gen import *
def gen_empty(p):
    p("s_endpgm")
K1 = ("k1_kernel", gen_k1, 256, 256, 163840, 256, 256)
KR = ("kr_kernel", gen_kred, 32, 64, 0, 144, 144)
K2 = ("k2_kernel", gen_k2, 224, 256, 163840, 512, 256)
E = ("e_kernel", gen_empty, 1, 64, 0, 8, 8)
def build2(kernels, out):
    hdr = open(f"cdna_kernels/{NAME}.s.ref").read().split("; @launch")[0]
    launch = ""; txt = ""; desc = ""; seen = set()
    for name, gen, grid, block, lds, vg, acc in kernels:
        launch += f"; @launch kernel={name} grid=({grid},1,1) block=({block},1,1) lds={lds}\n"
        if name in seen: continue
        seen.add(name)
        p = Prog(); gen(p)
        t, d = kernel_block(name, p.text(), vg, acc)
        txt += t; desc += ".p2align 6\n" + d
    s = hdr + launch + '.amdgcn_target "amdgcn-amd-amdhsa--gfx950"\n.text\n' + txt + '.section .rodata,"a"\n' + desc
    open(out, "w").write(s)
build2([K1, KR, K2, E, E, E], "v1a.s")
build2([K1, K1, KR, K2], "v1b.s")
build2([K1, KR, K2, K2], "v1c.s")
build2([K1, KR, KR, K2], "v1d.s")
build2([E, E, E, K1, KR, K2], "v1e.s")
```

```python
import sys
sys.path.insert(0, "gen")
from asmlib import *
import gen as G1
from gen import vr, ar, sr, NAME, build, LOG2E

WS_H, WS_PQ, WS_KVP, WS_KVF, WS_FLG, WS_SIZE = 0, 0x700000, 0x8C0000, 0x9C0000, 0x9D0000, 0xA00000
FL_ROW, FL_KF1, FL_KF2 = 0, 64 * 128, 128 * 128
WREG = 40960
OPT = dict(dbg=False, mapping="C", dstyle="dot", spin=200000)

S_X, S_W, S_WS, S_B, S_W2, S_OUT, S_B2, S_DBG = 4, 8, 12, 16, 20, 24, 28, 32
S_WQKV, S_W1, S_WO = 36, 38, 40
S_NB, S_NREC, S_NCOL, S_NSTR, S_NBREC, S_NBOFF, S_NST2 = 42, 44, 45, 46, 47, 48, 49
S_C, S_M = 50, 57
S_WV, S_WBLK, S_R, S_J, S_RB, S_CS = 64, 65, 66, 67, 68, 69
S_ST, S_T0, S_T1, S_T2, S_EPS, S_LN2 = 74, 75, 76, 77, 78, 79
S_MEV, S_MOD = 80, 82
S_PROG, S_NXT, S_CUR, S_SPIN = 84, 85, 86, 87
S_TAB = 88
S_K1, S_K2 = 100, 101
S_ROWM = 3
V_L, V_AW = 1, 2
V_RS, V_RSL, V_L16, V_KFO = 6, 7, 8, 9
V_WA, V_WB = 10, 11
V_B0, V_B1, V_XA = 12, 14, 16
V_ROW, V_TP, V_BO = 20, 21, 22
V_W2 = 23
V_A0 = 27
V_FO, V_FT, V_STAMP = 29, 30, 31
V_ACC, V_SV, V_TMP, V_X = 32, 64, 96, 144
A_RING = 224
SCR = 16 * 1024

def pos(u):
    return u if u % 2 == 0 else (u + 2 if u < 13 else 1)

def stamp(p, real=False):
    if not OPT["dbg"]: return
    p("s_memrealtime s[70:71]" if real else "s_memtime s[70:71]")
    p.lg += 0
    p("s_waitcnt lgkmcnt(0)")
    p("s_mov_b64 exec, s[72:73]")
    p(f"v_mov_b32 v{V_STAMP}, s70")
    p("s_mov_b64 exec, -1")
    p("s_lshl_b64 s[72:73], s[72:73], 1")
def stamp_init(p):
    if not OPT["dbg"]: return
    p("s_mov_b64 s[72:73], 1")
    p(f"v_mov_b32 v{V_STAMP}, 0")
    stamp(p, True); stamp(p)
def stamp_out(p):
    if not OPT["dbg"]: return
    stamp(p); stamp(p, True)
    p(f"""
    s_lshl_b32 s70, s2, 2
    s_add_u32 s70, s70, {sr(S_WV)}
    s_lshl_b32 s70, s70, 8
    s_add_u32 s70, s70, 0xA00000
    v_lshlrev_b32 v0, 2, {vr(V_L)}
    s_mov_b32 {sr(S_WS+2)}, 0x1000000
    buffer_store_dword v{V_STAMP}, v0, {sr(S_WS,4)}, s70 offen
    """)

class Gaps:
    def __init__(self, n, cap=4):
        self.g = [[] for _ in range(n)]
        self.cost = [0] * n
        self.cap = cap
    def put(self, gi, item, cost=None):
        c = cost if cost is not None else (item.count("\n") + 1 if isinstance(item, str) else 1)
        self.g[gi].append(item); self.cost[gi] += c
    def spread(self, items, start, cap=None, end=None):
        cap = cap or self.cap
        gi = start
        for it in items:
            c = it.count("\n") + 1 if isinstance(it, str) else getattr(it, "cost", 1)
            while self.cost[gi] + c > cap and self.cost[gi] > 0 and gi + 1 < (end or len(self.g)):
                gi += 1
            self.put(gi, it, c)
        return gi
    def emit(self, p, gi):
        for it in self.g[gi]:
            if isinstance(it, str): p(it)
            else: it(p)

def F(fn, cost=1):
    fn.cost = cost
    return fn

def ring_reads(p, e, half):
    st = A_RING + 8 * (e % 4)
    ee = e % 28
    off = pos(ee >> 1) * 1024
    a = V_AW + half + 2 * (ee & 1)
    p(f"ds_read_b64_tr_b16 {ar(st+4*half,2)}, {vr(a)} offset:{off}")
    p(f"ds_read_b64_tr_b16 {ar(st+4*half+2,2)}, {vr(a)} offset:{off+512}")

class Ctx:
    pass

def spin_check(p, lab, reload, cmp_lines):
    p(f"s_mov_b32 {sr(S_SPIN)}, {OPT['spin']}")
    p(f"{lab}_c:")
    p(cmp_lines)
    p(f"s_cbranch_vccz {lab}_ok")
    vm0 = p.vm
    p(f"s_sub_u32 {sr(S_SPIN)}, {sr(S_SPIN)}, 1")
    p(f"s_cbranch_scc1 {lab}_ok")
    p(reload)
    p("s_waitcnt vmcnt(0)")
    p(f"s_branch {lab}_c")
    p.vm = vm0
    p(f"{lab}_ok:")

def switch_items():
    now = f"""s_mov_b64 {sr(S_W,2)}, {sr(S_NB,2)}
    s_mov_b32 {sr(S_W+2)}, {sr(S_NREC)}
    s_mul_i32 {sr(S_C)}, {sr(S_M)}, {sr(S_NST2)}
    v_mad_u32_u24 {vr(V_WA)}, {vr(V_ROW)}, {sr(S_NSTR)}, {vr(V_TP)}
    v_add_u32 {vr(V_WA)}, {sr(S_NCOL)}, {vr(V_WA)}"""
    later = [f"""s_lshr_b32 {sr(S_T2)}, {sr(S_NST2)}, 1
    s_sub_u32 {sr(S_T2)}, {sr(S_T2)}, 1024
    v_add_u32 {vr(V_WB)}, {sr(S_T2)}, {vr(V_WA)}"""]
    for c in range(1, 7):
        later.append(f"s_mul_i32 {sr(S_C+c)}, {sr(S_M+c)}, {sr(S_NST2)}")
    return now, later

def gen_pass(p, cx, name, gaps, head, entry_after, last=False):
    vm_entry = p.vm
    cx.ea = lambda u: min(63, entry_after[u] + (p.vm - vm_entry))
    head(p)
    nxt = {}
    def wait_piece(u, cur=True):
        if cur and u not in cx.wt_in:
            n = entry_after[u] + (p.vm - vm_entry)
            p(f"s_waitcnt vmcnt({min(n,63)})")
        else:
            p.wait_vm(cx.wt_in[u] if cur else nxt[u])
    cx.wt_in = {}
    rt = cx.rt
    now, later = switch_items()
    for e in range(28):
        st = A_RING + 8 * (e % 4)
        p.wait_lg(rt[e])
        p(f"v_mfma_f32_32x32x16_bf16 {vr(V_ACC,16)}, {ar(st,4)}, {vr(V_X+4*e,4)}, {vr(V_ACC,16)}")
        if e % 4 == 1:
            v = (e + 3) // 4
            if v < 7: wait_piece(2 * v + 1)
            elif not last: wait_piece(1, cur=False)
            if cx.pre_bar.get((name, v)): cx.pre_bar[(name, v)](p)
            p("s_barrier")
        if not (last and e + 3 >= 28): ring_reads(p, e + 3, 0)
        gaps.emit(p, 2 * e)
        p(f"v_mfma_f32_32x32x16_bf16 {vr(V_ACC+16,16)}, {ar(st+4,4)}, {vr(V_X+4*e,4)}, {vr(V_ACC+16,16)}")
        if not (last and e + 3 >= 28): ring_reads(p, e + 3, 1)
        rt[e + 3] = p.lgtag()
        if e % 4 == 1:
            v = (e + 3) // 4
            uo = (2 * v - 3) % 14
            p(f"s_add_u32 m0, {sr(S_WBLK)}, {pos(2*v-2)*1024}")
            p(f"buffer_load_dwordx4 {vr(V_WB)}, {sr(S_W,4)}, {sr(S_C+(uo>>1))} offen offset:1024 lds")
            if v == 1: cx.wt_in[13] = p.vmtag()
            else: nxt[uo] = p.vmtag()
            if v == 1: p(now)
        if e % 4 == 2:
            v = (e + 2) // 4
            p(f"s_add_u32 m0, {sr(S_WBLK)}, {pos(2*v-2)*1024}")
            p(f"buffer_load_dwordx4 {vr(V_WA)}, {sr(S_W,4)}, {sr(S_C+v-1)} offen lds")
            nxt[2 * v - 2] = p.vmtag()
            if v == 1:
                p(later[0]); p(later[1])
            elif v < 7:
                p(later[v])
        if e == 3 and not last:
            p(f"s_mov_b32 {sr(S_B+2)}, {sr(S_NBREC)}")
            p(f"buffer_load_ushort {vr(V_B0)}, {vr(V_BO)}, {sr(S_B,4)}, {sr(S_NBOFF)} offen")
            p(f"buffer_load_ushort {vr(V_B1)}, {vr(V_BO)}, {sr(S_B,4)}, {sr(S_NBOFF)} offen offset:64")
            cx.btag = p.vmtag()
        gaps.emit(p, 2 * e + 1)
    cx.rt = {0: rt[28], 1: rt[29], 2: rt[30]}
    cx.rt_after = {k: p.lg - rt[28 + k] for k in range(3)}
    cx.exit_after = {u: p.vm - t for u, t in nxt.items()}
    cx.exit_after["b"] = p.vm - cx.btag
    cx.nxt = nxt

def m0_guard(items):
    return items

def w2_dma_items(cx, pr, slot):
    so = sr(S_T1)
    if pr < 12: a = f"s_mul_i32 {so}, {sr(S_TAB+pr)}, 14"
    else: a = f"s_mov_b32 {so}, {pr*114688}"
    its = []
    for k in range(4):
        def f(p, k=k):
            if k == 0: p(a)
            p(f"s_add_u32 m0, {sr(S_WBLK)}, {(20+4*slot)*1024}")
            p(f"buffer_load_dwordx4 {vr(V_W2+k)}, {sr(S_W2,4)}, {so} offen offset:{k*1024} lds")
            cx.w2t[pr] = p.vmtag()
        its.append(F(f, 3 if k == 0 else 2))
    return its
def w2_dma_block(p, cx, pr, slot):
    so = sr(S_T1)
    if pr < 12: p(f"s_mul_i32 {so}, {sr(S_TAB+pr)}, 14")
    else: p(f"s_mov_b32 {so}, {pr*114688}")
    p(f"s_add_u32 m0, {sr(S_WBLK)}, {(20+4*slot)*1024}")
    for k in range(4):
        p(f"buffer_load_dwordx4 {vr(V_W2+k)}, {sr(S_W2,4)}, {so} offen offset:{k*1024} lds")
    cx.w2t[pr] = p.vmtag()
def w2_read_items(cx, pr, slot, after=None):
    its = []
    def w(p):
        if after is not None: p(f"s_waitcnt vmcnt({min(63, after(p))})")
        else: p.wait_vm(cx.w2t[pr])
    its.append(F(w, 1))
    for un in range(2):
        for ct in range(2):
            u = 2 * pr + un
            its.append("\n".join(f"ds_read_b64_tr_b16 {ar(8*u+4*ct+2*t,2)}, {vr(V_A0+ct)} offset:{(20+4*slot+2*un+t)*1024}" for t in range(2)))
    return its

def d_items(s):
    its = []
    for q in range(4):
        b = V_X + 16 * s + 4 * q
        t = 108 + 8 * (q & 1)
        if OPT["dstyle"] == "dot":
            for k in range(4):
                its.append(f"v_dot2_f32_bf16 {vr(t+2*k)}, {vr(b+k)}, {sr(S_K1)}, v104\nv_dot2_f32_bf16 {vr(t+2*k+1)}, {vr(b+k)}, {sr(S_K2)}, v104")
        else:
            for k in range(4):
                its.append(f"v_lshlrev_b32 {vr(t+2*k)}, 16, {vr(b+k)}\nv_and_b32 {vr(t+2*k+1)}, {sr(S_K2)}, {vr(b+k)}")
            for k in range(4):
                its.append(f"v_add_f32 {vr(t+2*k)}, v104, {vr(t+2*k)}\nv_add_f32 {vr(t+2*k+1)}, v104, {vr(t+2*k+1)}")
        for k in range(0, 4, 2):
            its.append(f"v_cvt_pk_bf16_f32 {vr(b+k)}, {vr(t+2*k)}, {vr(t+2*k+1)}\nv_cvt_pk_bf16_f32 {vr(b+k+1)}, {vr(t+2*k+2)}, {vr(t+2*k+3)}")
    return its

def save_phi(i): return f"v_fma_f32 {vr(V_SV+i)}, {vr(V_ACC+i)}, {vr(V_RSL)}, {sr(S_EPS)}"
def save_mul(i): return f"v_mul_f32 {vr(V_SV+i)}, {vr(V_RS)}, {vr(V_ACC+i)}"
def save_max(i): return f"v_max_f32 {vr(V_SV+i)}, 0, {vr(V_ACC+i)}"

def phi_items(lo, hi, T):
    its = []
    for i in range(lo, hi, 2):
        t = T + 2 * ((i >> 1) & 1)
        its.append(f"v_exp_f32 {vr(t)}, {vr(V_SV+i)} clamp\nv_exp_f32 {vr(t+1)}, {vr(V_SV+i+1)} clamp")
        its.append(f"v_max_f32 {vr(V_SV+i)}, {sr(S_EPS)}, {vr(V_SV+i)}\nv_max_f32 {vr(V_SV+i+1)}, {sr(S_EPS)}, {vr(V_SV+i+1)}")
        its.append(f"v_fma_f32 {vr(t)}, {vr(V_SV+i)}, {sr(S_LN2)}, {vr(t)}\nv_fma_f32 {vr(t+1)}, {vr(V_SV+i+1)}, {sr(S_LN2)}, {vr(t+1)}")
        its.append(f"v_cvt_pk_bf16_f32 {vr(V_SV+i//2)}, {vr(t)}, {vr(t+1)}")
    return its

def h_items(cx, store=True):
    its = []
    for q in range(4):
        for i in range(8 * q, 8 * q + 8, 2):
            its.append(f"v_mul_f32 {vr(V_SV+i)}, {vr(V_RS)}, {vr(V_SV+i)}\nv_mul_f32 {vr(V_SV+i+1)}, {vr(V_RS)}, {vr(V_SV+i+1)}")
            its.append(f"v_mul_f32 {vr(V_SV+i)}, {vr(V_SV+i)}, {vr(V_SV+i)}\nv_mul_f32 {vr(V_SV+i+1)}, {vr(V_SV+i+1)}, {vr(V_SV+i+1)}")
            its.append(f"v_cvt_pk_bf16_f32 {vr(V_SV+i//2)}, {vr(V_SV+i)}, {vr(V_SV+i+1)}")
        its.append(st_item(cx, q))
    return its
def st_item(cx, q):
    def f(p):
        p(f"buffer_store_dwordx4 {vr(V_SV+4*q,4)}, {vr(V_L16)}, {sr(S_WS,4)}, {sr(S_ST)} offen offset:{q*1024} sc1")
        cx.sttag = p.vmtag()
    return F(f, 1)
def q_items(cx, T):
    its = []
    for q in range(4):
        its += phi_items(8 * q, 8 * q + 8, T)
        its.append(f"v_permlane32_swap_b32 {vr(V_SV+4*q)}, {vr(V_SV+4*q+2)}\nv_permlane32_swap_b32 {vr(V_SV+4*q+1)}, {vr(V_SV+4*q+3)}")
        its.append(st_item(cx, q))
    return its

def st_addr_h(g):
    return f"""s_lshl_b32 {sr(S_ST)}, {sr(S_R)}, 2
    s_add_u32 {sr(S_ST)}, {sr(S_ST)}, {sr(S_WV)}
    s_mul_i32 {sr(S_ST)}, {sr(S_ST)}, {112*1024}
    s_lshl_b32 {sr(S_T0)}, {g}, 12
    s_add_u32 {sr(S_ST)}, {sr(S_ST)}, {sr(S_T0)}"""

def next_h(g):
    return f"""s_mov_b64 {sr(S_NB,2)}, {sr(S_W1,2)}
    s_cmp_lt_u32 {g}, 28
    s_cselect_b32 {sr(S_NREC)}, 1605632, 0
    s_cselect_b32 {sr(S_NBREC)}, 3584, 0
    s_lshl_b32 {sr(S_NCOL)}, {g}, 7
    s_mov_b32 {sr(S_NBOFF)}, {sr(S_NCOL)}
    s_movk_i32 {sr(S_NSTR)}, 3584
    s_mov_b32 {sr(S_NST2)}, {64*3584}"""

def flag_post(val_s, voff):
    return f"v_mov_b32 {vr(V_FT)}, {val_s}\nbuffer_store_dword {vr(V_FT)}, {voff}, {sr(S_WS,4)}, 0 offen sc1"
```

```python
import sys
sys.path.insert(0, "gen")
from asmlib import *
NAME = "recurrent_scan__linear_attn_block__dense_activation_squared_relu__prompt"

WS_H = 0
WS_PQ = 0x700000
WS_KVP = 0x8C0000
WS_KVF = 0x9C0000
WS_FLG = 0x9D0000
WS_SIZE = 0xA00000
LOG2E = 0x3FB8AA3B

def vr(a, n=1):
    return f"v{a}" if n == 1 else f"v[{a}:{a+n-1}]"
def ar(a, n=1):
    return f"a{a}" if n == 1 else f"a[{a}:{a+n-1}]"
def sr(a, n=1):
    return f"s{a}" if n == 1 else f"s[{a}:{a+n-1}]"

DBG = False
def stamp(p, vreg, real=False):
    if not DBG: return
    p(f"s_memrealtime s[70:71]" if real else "s_memtime s[70:71]")
    p("s_waitcnt lgkmcnt(0)")
    p("s_mov_b64 exec, s[72:73]")
    p(f"v_mov_b32 v{vreg}, s70")
    p("s_mov_b64 exec, -1")
    p("s_lshl_b64 s[72:73], s[72:73], 1")
def stamp_init(p, vreg):
    if not DBG: return
    p("s_mov_b64 s[72:73], 1")
    p(f"v_mov_b32 v{vreg}, 0")
    stamp(p, vreg, True)
    stamp(p, vreg)
def stamp_out(p, vreg, srd, wv, base, tmpv):
    if not DBG: return
    stamp(p, vreg)
    stamp(p, vreg, True)
    p(f"s_lshl_b32 s70, s2, 2")
    p(f"s_add_u32 s70, s70, {wv}")
    p(f"s_lshl_b32 s70, s70, 8")
    p(f"s_add_u32 s70, s70, {base}")
    p(f"v_mbcnt_lo_u32_b32 v{tmpv}, -1, 0")
    p(f"v_mbcnt_hi_u32_b32 v{tmpv}, -1, v{tmpv}")
    p(f"v_lshlrev_b32 v{tmpv}, 2, v{tmpv}")
    p(f"s_mov_b32 s{srd+2}, 0x1000000")
    p(f"buffer_store_dword v{vreg}, v{tmpv}, s[{srd}:{srd+3}], s70 offen")

S_X, S_W, S_WS, S_B = 4, 8, 12, 16
S_WQKV, S_W1 = 20, 22
S_WOFF, S_WSTEP = 26, 27
S_NB, S_NREC, S_NOFF, S_NSTEP, S_NBREC, S_NBOFF = 28, 30, 31, 32, 33, 34
S_WBLK, S_R, S_J, S_P, S_CUR, S_NXT = 35, 36, 37, 38, 39, 40
S_RET, S_PASS = 42, 44
S_ONES, S_LO1, S_HI1 = 46, 47, 48
S_ST, S_T0, S_T1, S_T2, S_T3 = 49, 50, 51, 52, 53
S_MEV, S_MOD = 60, 62
S_WV = 64
V_L, V_AW0, V_AW1, V_WOFF, V_NOFF = 1, 2, 3, 4, 5
V_AW2, V_AW3 = 14, 15
WREG = 40960
V_RS, V_RSL, V_L16 = 6, 8, 9
V_ROW, V_T, V_P16, V_BO = 10, 11, 12, 13
V_XA = 16
V_B0, V_B1 = 20, 24
V_ACC = 32
V_RING = 64
V_TMP = 96
V_X = 144

def pass_waits(extra_b=None):
    res = {}
    for ctx in ("first", "kv", "qh"):
        seq = []
        if ctx == "first":
            seq += [("W", 0, u) for u in range(13)]
        else:
            seq += [("W", -1, 13), ("W", 0, 0), ("b",), ("b",)]
            for v in range(2, 8):
                seq += [("W", 0, 2 * v - 3), ("W", 0, 2 * v - 2)]
            seq += [("st",)] * (1 if ctx == "kv" else 4)
        for v in range(1, 8):
            tgt = ("W", 0, 2 * v + 1) if v < 7 else ("W", 1, 1)
            n = len(seq) - 1 - seq.index(tgt)
            res[v] = min(res.get(v, 99), n)
            if v == 1:
                seq += [("W", 0, 13), ("W", 1, 0), ("b",), ("b",)]
            else:
                seq += [("W", 1, 2 * v - 3), ("W", 1, 2 * v - 2)]
    return res

def w_reads(p, e, half):
    st = V_RING + 8 * (e % 4)
    ee = e % 28
    off = (ee >> 1) * 1024
    a = (V_AW0, V_AW1, V_AW2, V_AW3)[half + 2 * (ee & 1)]
    p(f"ds_read_b64_tr_b16 {vr(st+4*half,2)}, {vr(a)} offset:{off}")
    p(f"ds_read_b64_tr_b16 {vr(st+4*half+2,2)}, {vr(a)} offset:{off+512}")

def w_dma(p, u):
    p(f"s_add_u32 m0, {sr(S_WBLK)}, {u*1024}")
    p(f"s_add_u32 {sr(S_WOFF)}, {sr(S_WOFF)}, {sr(S_WSTEP)}")
    p(f"buffer_load_dwordx4 {vr(V_WOFF)}, {sr(S_W,4)}, {sr(S_WOFF)} offen lds")

def gen_pass(p, lab):
    N = pass_waits()
    p(f"{lab}:")
    p("s_nop 1")
    p(f"v_mfma_f32_32x32x16_bf16 {vr(V_ACC,16)}, {vr(V_B0,4)}, {vr(V_XA,4)}, 0")
    p(f"v_mfma_f32_32x32x16_bf16 {vr(V_ACC+16,16)}, {vr(V_B1,4)}, {vr(V_XA,4)}, 0")
    for e in range(28):
        st = V_RING + 8 * (e % 4)
        p("s_waitcnt lgkmcnt(8)")
        p(f"v_mfma_f32_32x32x16_bf16 {vr(V_ACC,16)}, {vr(st,4)}, {vr(V_X+4*e,4)}, {vr(V_ACC,16)}")
        if e % 4 == 1:
            v = (e + 3) // 4
            p(f"s_waitcnt vmcnt({N[v]})")
            p("s_barrier")
            if v == 1:
                w_dma(p, 13)
                p(f"s_mov_b64 {sr(S_W,2)}, {sr(S_NB,2)}")
                p(f"s_mov_b32 {sr(S_W+2)}, {sr(S_NREC)}")
                p(f"s_sub_u32 {sr(S_WOFF)}, {sr(S_NOFF)}, {sr(S_NSTEP)}")
                p(f"s_mov_b32 {sr(S_WSTEP)}, {sr(S_NSTEP)}")
                p(f"s_mov_b32 {sr(S_B+2)}, {sr(S_NBREC)}")
                p(f"v_mov_b32 {vr(V_WOFF)}, {vr(V_NOFF)}")
                w_dma(p, 0)
                p(f"buffer_load_ushort {vr(V_B0)}, {vr(V_BO)}, {sr(S_B,4)}, {sr(S_NBOFF)} offen")
                p(f"buffer_load_ushort {vr(V_B1)}, {vr(V_BO)}, {sr(S_B,4)}, {sr(S_NBOFF)} offen offset:64")
            else:
                w_dma(p, 2 * v - 3)
                w_dma(p, 2 * v - 2)
        w_reads(p, e + 3, 0)
        p(f"v_mfma_f32_32x32x16_bf16 {vr(V_ACC+16,16)}, {vr(st+4,4)}, {vr(V_X+4*e,4)}, {vr(V_ACC+16,16)}")
        w_reads(p, e + 3, 1)
    p(f"s_setpc_b64 {sr(S_RET,2)}")

def phi_pair(p, acc, out, t):
    p(f"v_pk_mul_f32 {vr(t,2)}, {vr(acc,2)}, {vr(V_RSL,2)} op_sel_hi:[1,0]")
    p(f"v_pk_fma_f32 {vr(t+2,2)}, {vr(acc,2)}, {vr(V_RS,2)}, {sr(S_T2,2)}")
    p(f"v_exp_f32 {vr(t)}, {vr(t)} clamp")
    p(f"v_exp_f32 {vr(t+1)}, {vr(t+1)} clamp")
    p(f"v_max_f32 {vr(t+2)}, {sr(S_T2)}, {vr(t+2)}")
    p(f"v_max_f32 {vr(t+3)}, {sr(S_T2)}, {vr(t+3)}")
    p(f"v_pk_add_f32 {vr(t,2)}, {vr(t,2)}, {vr(t+2,2)}")
    p(f"v_cvt_pk_bf16_f32 {vr(out)}, {vr(t)}, {vr(t+1)}")

def gen_k1(p):
    O = V_TMP
    T = V_TMP + 16
    p(f"""
    s_cmp_ge_u32 s2, 256
    s_cbranch_scc1 K1_END
    """)
    stamp_init(p, 140)
    p(f"""
    s_load_dwordx4 s[52:55], s[0:1], 0
    s_load_dwordx4 s[56:59], s[0:1], 32
    s_load_dwordx2 {sr(S_WS,2)}, s[0:1], 80
    v_and_b32 {vr(V_L)}, 63, v0
    v_lshrrev_b32 v108, 6, v0
    v_lshrrev_b32 v109, 3, {vr(V_L)}
    v_readfirstlane_b32 {sr(S_WV)}, v108
    v_and_b32 v28, 7, {vr(V_L)}
    v_lshrrev_b32 v29, 4, {vr(V_L)}
    v_xor_b32 v30, v28, v29
    v_lshlrev_b32 v30, 4, v30
    v_mov_b32 v31, 896
    v_mad_u32_u24 v96, v109, v31, v30
    v_xor_b32 v97, 64, v96
    v_add_u32 v98, 14336, v96
    v_add_u32 v99, 21504, v97
    v_add_u32 v97, 7168, v97
    s_and_b32 {sr(S_T0)}, s2, 7
    s_lshr_b32 {sr(S_T1)}, s2, 3
    s_and_b32 {sr(S_R)}, {sr(S_T0)}, 1
    s_lshl_b32 {sr(S_R)}, {sr(S_R)}, 3
    s_and_b32 {sr(S_J)}, {sr(S_T1)}, 7
    s_add_u32 {sr(S_R)}, {sr(S_R)}, {sr(S_J)}
    s_lshr_b32 {sr(S_T0)}, {sr(S_T0)}, 1
    s_lshl_b32 {sr(S_T0)}, {sr(S_T0)}, 2
    s_lshr_b32 {sr(S_J)}, {sr(S_T1)}, 3
    s_add_u32 {sr(S_J)}, {sr(S_J)}, {sr(S_T0)}
    s_mul_i32 {sr(S_WBLK)}, {sr(S_WV)}, {WREG}
    s_lshl_b32 {sr(S_T0)}, {sr(S_R)}, 2
    s_add_u32 {sr(S_T0)}, {sr(S_T0)}, {sr(S_WV)}
    s_mul_i32 {sr(S_T1)}, {sr(S_T0)}, 28672
    s_mov_b32 {sr(S_X+2)}, 1835008
    s_mov_b32 {sr(S_X+3)}, 0x00020000
    s_mov_b32 {sr(S_W+3)}, 0x00020000
    s_mov_b32 {sr(S_WS+2)}, {WS_SIZE}
    s_mov_b32 {sr(S_WS+3)}, 0x00020000
    s_mov_b32 {sr(S_B+3)}, 0x00020000
    s_waitcnt lgkmcnt(0)
    s_mov_b64 {sr(S_X,2)}, s[52:53]
    s_mov_b64 {sr(S_WQKV,2)}, s[54:55]
    s_mov_b64 {sr(S_W1,2)}, s[56:57]
    s_mov_b64 {sr(S_B,2)}, s[58:59]
    """)
    stamp(p, 140)
    xt = []
    for v in range(7):
        for q in range(4):
            p(f"s_add_u32 m0, {sr(S_WBLK)}, {(12+4*v+q)*1024 - 128*v}")
            p(f"buffer_load_dwordx4 {vr(96+q)}, {sr(S_X,4)}, {sr(S_T1)} offen offset:{128*v} lds")
        xt.append(p.vmtag())
    p(f"""
    v_lshl_add_u32 {vr(V_ROW)}, {sr(S_WV)}, 3, v109
    v_lshrrev_b32 {vr(V_T)}, 2, v28
    v_and_b32 v30, 1, v29
    v_xor_b32 {vr(V_T)}, {vr(V_T)}, v30
    v_and_b32 {vr(V_P16)}, 3, v28
    v_lshlrev_b32 {vr(V_P16)}, 4, {vr(V_P16)}
    s_movk_i32 {sr(S_T0)}, 2688
    s_movk_i32 {sr(S_T1)}, 896
    v_mad_u32_u24 {vr(V_WOFF)}, {vr(V_ROW)}, {sr(S_T0)}, {vr(V_P16)}
    v_mad_u32_u24 {vr(V_WOFF)}, {vr(V_T)}, {sr(S_T1)}, {vr(V_WOFF)}
    s_mov_b64 {sr(S_W,2)}, {sr(S_WQKV,2)}
    s_mov_b32 {sr(S_W+2)}, 1204224
    s_mul_i32 {sr(S_WOFF)}, {sr(S_J)}, 56
    s_and_b32 {sr(S_T0)}, {sr(S_J)}, 1
    s_lshl_b32 {sr(S_T0)}, {sr(S_T0)}, 3
    s_sub_u32 {sr(S_WOFF)}, {sr(S_WOFF)}, {sr(S_T0)}
    s_sub_u32 {sr(S_WOFF)}, {sr(S_WOFF)}, {32*2688-896}
    s_mov_b32 {sr(S_WSTEP)}, {32*2688}
    """)
    wt = []
    for u in range(12):
        w_dma(p, u)
        wt.append(p.vmtag())
    p(f"""
    v_lshrrev_b32 v30, 5, {vr(V_L)}
    v_bfe_u32 v31, {vr(V_L)}, 2, 2
    v_mul_u32_u24 {vr(V_AW0)}, {WREG}, v30
    v_lshl_add_u32 {vr(V_AW0)}, v31, 7, {vr(V_AW0)}
    v_bfe_u32 v31, {vr(V_L)}, 3, 1
    v_lshl_add_u32 {vr(V_AW0)}, v31, 6, {vr(V_AW0)}
    v_bfe_u32 v31, {vr(V_L)}, 4, 1
    v_lshl_add_u32 {vr(V_AW0)}, v31, 5, {vr(V_AW0)}
    v_and_b32 v31, 3, {vr(V_L)}
    v_lshl_add_u32 {vr(V_AW0)}, v31, 3, {vr(V_AW0)}
    v_xor_b32 {vr(V_AW1)}, 64, {vr(V_AW0)}
    v_add_u32 {vr(V_AW2)}, {2*WREG}, {vr(V_AW0)}
    v_add_u32 {vr(V_AW3)}, {2*WREG}, {vr(V_AW1)}
    v_bfe_u32 v31, {vr(V_L)}, 1, 3
    v_xor_b32 v31, v31, v30
    v_lshlrev_b32 v100, 4, v31
    v_lshl_add_u32 v100, v28, 7, v100
    v_bfe_u32 v31, {vr(V_L)}, 3, 2
    v_lshl_add_u32 v100, v31, 10, v100
    s_add_u32 {sr(S_T0)}, {sr(S_WBLK)}, {12*1024}
    v_add_u32 v100, {sr(S_T0)}, v100
    v_xor_b32 v101, 32, v100
    v_xor_b32 v102, 64, v100
    v_xor_b32 v103, 96, v100
    v_lshlrev_b32 {vr(V_L16)}, 4, {vr(V_L)}
    v_and_b32 {vr(V_BO)}, 31, {vr(V_L)}
    v_lshlrev_b32 {vr(V_BO)}, 1, {vr(V_BO)}
    s_mov_b32 {sr(S_ONES)}, 0x3f803f80
    s_mov_b32 {sr(S_LO1)}, 0x00003f80
    s_mov_b32 {sr(S_HI1)}, 0x3f800000
    v_mov_b32 v104, 0
    v_mov_b32 v105, 0
    v_mov_b32 v106, 0
    v_mov_b32 v107, 0
    """)
    for i in range(V_XA, V_B1 + 4):
        p(f"v_mov_b32 {vr(i)}, 0")
    def stats(v):
        for i in range(16):
            x = V_X + 16 * v + i
            p(f"v_dot2c_f32_bf16 {vr(104+(i&1))}, {sr(S_ONES)}, {vr(x)}")
            p(f"v_dot2c_f32_bf16 {vr(106+(i&1))}, {vr(x)}, {vr(x)}")
    stamp(p, 140)
    lt = []
    for v in range(7):
        p.wait_vm(xt[v])
        for k in range(4):
            p(f"ds_read_b128 {vr(V_X+16*v+4*k,4)}, {vr(100+k)} offset:{v*4096}")
        lt.append(p.lgtag())
        if v >= 1:
            p.wait_lg(lt[v - 1])
            if v == 1:
                w_dma(p, 12)
            stats(v - 1)
    p.wait_lg(lt[6])
    stats(6)
    stamp(p, 140)
    p(f"""
    v_add_f32 v104, v104, v105
    v_add_f32 v106, v106, v107
    v_mov_b32 v105, v104
    v_mov_b32 v107, v106
    v_permlane32_swap_b32 v104, v105
    v_permlane32_swap_b32 v106, v107
    v_add_f32 v104, v104, v105
    v_add_f32 v106, v106, v107
    v_mul_f32 v104, 0x3b124925, v104
    v_mul_f32 v106, 0x3b124925, v106
    v_fma_f32 v106, -v104, v104, v106
    v_max_f32 v106, 0, v106
    v_cvt_pk_bf16_f32 v105, v104, v106
    v_and_b32 v106, 0xffff0000, v105
    v_lshlrev_b32 v104, 16, v105
    v_add_f32 v106, 0x3727c5ac, v106
    v_cvt_pk_bf16_f32 v106, v106, v106
    v_and_b32 v106, 0xffff0000, v106
    v_sqrt_f32 v106, v106
    v_xor_b32 v104, 0x80000000, v104
    v_cvt_pk_bf16_f32 v106, v106, v106
    v_and_b32 v107, 0xffff0000, v106
    v_rcp_f32 {vr(V_RS)}, v107
    v_and_b32 v106, 0xffff, v106
    v_cmp_gt_u32 vcc, 32, {vr(V_L)}
    v_mov_b32 {vr(V_RS+1)}, {vr(V_RS)}
    v_mul_f32 {vr(V_RSL)}, {hex(LOG2E)}, {vr(V_RS)}
    v_cndmask_b32 {vr(V_XA)}, 0, v106, vcc
    """)
    for i in range(0, 112, 4):
        for k in range(4):
            x = V_X + i + k
            p(f"v_dot2_f32_bf16 {vr(108+2*k)}, {vr(x)}, {sr(S_LO1)}, v104")
            p(f"v_dot2_f32_bf16 {vr(109+2*k)}, {vr(x)}, {sr(S_HI1)}, v104")
        for k in range(4):
            x = V_X + i + k
            p(f"v_cvt_pk_bf16_f32 {vr(x)}, {vr(108+2*k)}, {vr(109+2*k)}")
    stamp(p, 140)
    p.wait_vm(wt[1])
    p("s_barrier")
    for e in range(3):
        w_reads(p, e, 0); w_reads(p, e, 1)
    p(f"""
    s_getpc_b64 {sr(S_PASS,2)}
    K1_PC:
    s_add_u32 {sr(S_PASS)}, {sr(S_PASS)}, K1_PASS-K1_PC
    s_addc_u32 {sr(S_PASS+1)}, {sr(S_PASS+1)}, 0
    s_mov_b32 {sr(S_CUR)}, -1
    s_mov_b32 {sr(S_NXT)}, {sr(S_J)}
    s_mov_b32 {sr(S_T2)}, 0x358637bd
    s_mov_b32 {sr(S_T3)}, 0x358637bd
    K1_LOOP:
    s_cmp_lt_u32 {sr(S_NXT)}, 7
    s_cbranch_scc0 K1_NH
    s_mov_b64 {sr(S_NB,2)}, {sr(S_WQKV,2)}
    s_mov_b32 {sr(S_NREC)}, 1204224
    s_lshl_b32 {sr(S_NOFF)}, {sr(S_NXT)}, 7
    s_movk_i32 {sr(S_T0)}, 2688
    s_mov_b32 {sr(S_NBREC)}, 0
    s_mov_b32 {sr(S_NBOFF)}, 0
    s_branch K1_NJ
    K1_NH:
    s_mov_b64 {sr(S_NB,2)}, {sr(S_W1,2)}
    s_cmp_lt_u32 {sr(S_NXT)}, 35
    s_cselect_b32 {sr(S_NREC)}, 1605632, 0
    s_cselect_b32 {sr(S_NBREC)}, 3584, 0
    s_sub_u32 {sr(S_NOFF)}, {sr(S_NXT)}, 7
    s_lshl_b32 {sr(S_NOFF)}, {sr(S_NOFF)}, 7
    s_mov_b32 {sr(S_NBOFF)}, {sr(S_NOFF)}
    s_movk_i32 {sr(S_T0)}, 3584
    K1_NJ:
    s_lshl_b32 {sr(S_NSTEP)}, {sr(S_T0)}, 5
    v_mad_u32_u24 {vr(V_NOFF)}, {vr(V_ROW)}, {sr(S_T0)}, {vr(V_P16)}
    v_lshl_add_u32 {vr(V_NOFF)}, {vr(V_T)}, 6, {vr(V_NOFF)}
    """)
    stamp(p, 140)
    p(f"""
    s_swappc_b64 {sr(S_RET,2)}, {sr(S_PASS,2)}
    """)
    stamp(p, 140)
    p(f"""
    s_lshl_b32 {sr(S_T0)}, {sr(S_R)}, 2
    s_add_u32 {sr(S_T0)}, {sr(S_T0)}, {sr(S_WV)}
    s_cmp_lt_i32 {sr(S_CUR)}, 0
    s_cbranch_scc1 K1_EKV
    s_cmp_lt_u32 {sr(S_CUR)}, 7
    s_cbranch_scc1 K1_EQ
    s_mul_i32 {sr(S_ST)}, {sr(S_T0)}, {112*1024}
    s_sub_u32 {sr(S_T1)}, {sr(S_CUR)}, 7
    s_lshl_b32 {sr(S_T1)}, {sr(S_T1)}, 12
    s_add_u32 {sr(S_ST)}, {sr(S_ST)}, {sr(S_T1)}
    s_nop 4
    """)
    for i in range(16):
        a = V_ACC + 2 * i
        t = T + 2 * (i % 4)
        p(f"v_pk_mul_f32 {vr(t,2)}, {vr(a,2)}, {vr(V_RS,2)}")
        p(f"v_max_f32 {vr(t)}, 0, {vr(t)}")
        p(f"v_max_f32 {vr(t+1)}, 0, {vr(t+1)}")
        p(f"v_pk_mul_f32 {vr(t,2)}, {vr(t,2)}, {vr(t,2)}")
        p(f"v_cvt_pk_bf16_f32 {vr(O+i)}, {vr(t)}, {vr(t+1)}")
    p("s_branch K1_ST")
    p(f"""
    K1_EQ:
    s_mul_i32 {sr(S_ST)}, {sr(S_T0)}, {56*512}
    s_lshl_b32 {sr(S_T1)}, {sr(S_CUR)}, 12
    s_add_u32 {sr(S_ST)}, {sr(S_ST)}, {sr(S_T1)}
    s_add_u32 {sr(S_ST)}, {sr(S_ST)}, {WS_PQ}
    s_nop 4
    """)
    for i in range(16):
        phi_pair(p, V_ACC + 2 * i, O + i, T + 4 * (i % 4))
    for q in range(4):
        p(f"v_permlane32_swap_b32 {vr(O+4*q)}, {vr(O+4*q+2)}")
        p(f"v_permlane32_swap_b32 {vr(O+4*q+1)}, {vr(O+4*q+3)}")
    p("K1_ST:")
    for q in range(4):
        p(f"buffer_store_dwordx4 {vr(O+4*q,4)}, {vr(V_L16)}, {sr(S_WS,4)}, {sr(S_ST)} offen offset:{q*1024}")
    p("s_branch K1_NEXT")
    SCR = 14 * 1024
    p(f"""
    K1_EKV:
    s_and_b32 {sr(S_T1)}, {sr(S_J)}, 1
    s_sub_u32 {sr(S_MEV+1)}, {sr(S_T1)}, 1
    s_mov_b32 {sr(S_MEV)}, 0
    s_sub_u32 {sr(S_MOD)}, 0, {sr(S_T1)}
    s_mov_b32 {sr(S_MOD+1)}, 0
    v_and_b32 v28, 31, {vr(V_L)}
    v_and_b32 v29, 7, {vr(V_L)}
    v_lshlrev_b32 v28, 7, v28
    v_lshl_add_u32 v28, v29, 4, v28
    v_lshrrev_b32 v29, 5, {vr(V_L)}
    v_lshl_add_u32 v28, v29, 3, v28
    s_add_u32 {sr(S_T1)}, {sr(S_WBLK)}, {SCR}
    v_add_u32 v28, {sr(S_T1)}, v28
    """)
    for i in range(8):
        phi_pair(p, V_ACC + 2 * i, O + i, T + 4 * (i % 4))
    for i in range(8):
        t = T + 2 * (i % 4)
        p(f"v_pk_mul_f32 {vr(t,2)}, {vr(V_ACC+16+2*i,2)}, {vr(V_RS,2)}")
        if i == 0:
            p(f"v_cndmask_b32 {vr(t)}, {vr(t)}, 1.0, {sr(S_MOD,2)}")
        if i == 6:
            p(f"v_cndmask_b32 {vr(t)}, {vr(t)}, 1.0, {sr(S_MEV,2)}")
        p(f"v_cvt_pk_bf16_f32 {vr(O+8+i)}, {vr(t)}, {vr(t+1)}")
    for c in range(8):
        p(f"v_xor_b32 {vr(T+c)}, {c*16}, v28")
        p(f"ds_write_b64 {vr(T+c)}, {vr(O+2*c,2)}")
    p(f"""
    v_lshrrev_b32 v28, 4, {vr(V_L)}
    v_bfe_u32 v29, {vr(V_L)}, 2, 2
    v_lshl_add_u32 v28, v28, 3, v29
    v_lshlrev_b32 v28, 7, v28
    v_bfe_u32 v30, {vr(V_L)}, 1, 1
    v_xor_b32 v29, v29, v30
    v_lshl_add_u32 v28, v29, 4, v28
    v_and_b32 v30, 1, {vr(V_L)}
    v_lshl_add_u32 v28, v30, 3, v28
    v_add_u32 v28, {SCR}, v28
    s_and_b32 {sr(S_T1)}, {sr(S_WV)}, 1
    s_lshl_b32 {sr(S_T1)}, {sr(S_T1)}, 5
    v_xor_b32 v29, {sr(S_T1)}, v28
    s_lshr_b32 {sr(S_T1)}, {sr(S_WV)}, 1
    s_lshl_b32 {sr(S_T1)}, {sr(S_T1)}, 5
    s_add_u32 {sr(S_T1)}, {sr(S_T1)}, 64
    v_xor_b32 v30, {sr(S_T1)}, v28
    v_xor_b32 v28, 64, v29
    v_xor_b32 v31, 64, v30
    s_lshl_b32 {sr(S_ST)}, {sr(S_J)}, 4
    s_add_u32 {sr(S_ST)}, {sr(S_ST)}, {sr(S_R)}
    s_lshl_b32 {sr(S_ST)}, {sr(S_ST)}, 12
    s_lshl_b32 {sr(S_T1)}, {sr(S_WV)}, 10
    s_add_u32 {sr(S_ST)}, {sr(S_ST)}, {sr(S_T1)}
    s_add_u32 {sr(S_ST)}, {sr(S_ST)}, {WS_KVP}
    v_add_u32 v136, {2*WREG}, v29
    v_add_u32 v137, {2*WREG}, v28
    v_add_u32 v138, {2*WREG}, v30
    v_add_u32 v139, {2*WREG}, v31
    s_waitcnt lgkmcnt(0)
    s_barrier
    """)
    F = V_TMP
    tg = []
    for m in range(4):
        aa = (29, 28, 30, 31) if m < 2 else (136, 137, 138, 139)
        o = (m & 1) * WREG
        p(f"ds_read_b64_tr_b16 {vr(F+8*m,2)}, v{aa[0]} offset:{o}")
        p(f"ds_read_b64_tr_b16 {vr(F+8*m+2,2)}, v{aa[1]} offset:{o+512}")
        p(f"ds_read_b64_tr_b16 {vr(F+8*m+4,2)}, v{aa[2]} offset:{o}")
        p(f"ds_read_b64_tr_b16 {vr(F+8*m+6,2)}, v{aa[3]} offset:{o+512}")
        tg.append(p.lgtag())
    D = V_TMP + 32
    for m in range(4):
        p.wait_lg(tg[m])
        c = "0" if m == 0 else vr(D, 4)
        p(f"v_mfma_f32_16x16x32_bf16 {vr(D,4)}, {vr(F+8*m,4)}, {vr(F+8*m+4,4)}, {c}")
    p(f"buffer_store_dwordx4 {vr(D,4)}, {vr(V_L16)}, {sr(S_WS,4)}, {sr(S_ST)} offen")
    p(f"""
    K1_NEXT:
    s_mov_b32 {sr(S_CUR)}, {sr(S_NXT)}
    s_add_u32 {sr(S_NXT)}, {sr(S_NXT)}, 16
    s_cmp_lt_u32 {sr(S_CUR)}, 35
    s_cbranch_scc1 K1_LOOP
    """)
    stamp_out(p, 140, S_WS, sr(S_WV), 0xA00000, 141)
    p(f"""
    K1_END:
    s_endpgm
    """)
    gen_pass(p, "K1_PASS")

def gen_kred(p):
    p(f"""
    s_cmp_ge_u32 s2, 32
    s_cbranch_scc1 KR_END
    s_load_dwordx2 s[12:13], s[0:1], 80
    s_mov_b32 s14, {WS_SIZE}
    s_mov_b32 s15, 0x00020000
    v_bfe_u32 v1, v0, 4, 1
    v_lshrrev_b32 v2, 5, v0
    v_and_b32 v3, 15, v0
    v_lshlrev_b32 v1, 11, v1
    v_lshl_add_u32 v1, v2, 9, v1
    v_lshl_add_u32 v1, v3, 4, v1
    v_lshlrev_b32 v2, 4, v0
    s_lshr_b32 s4, s2, 1
    s_and_b32 s5, s2, 1
    s_lshl_b32 s6, s4, 16
    s_lshl_b32 s7, s5, 10
    s_add_u32 s6, s6, s7
    s_add_u32 s6, s6, {WS_KVP}
    s_lshl_b32 s7, s2, 10
    s_add_u32 s7, s7, {WS_KVF}
    s_and_b32 s4, s4, 1
    s_cmp_eq_u32 s4, 0
    s_cselect_b32 s20, 0x1fffffff, 0xfffffff1
    s_mov_b32 s21, s20
    s_mov_b32 s22, s20
    s_mov_b32 s23, s20
    s_lshl_b32 s8, s4, 1
    s_or_b32 s8, s8, s5
    s_cmp_eq_u32 s8, 2
    s_cselect_b32 s20, 0, s20
    s_cmp_eq_u32 s8, 1
    s_cselect_b32 s23, 0, s23
    s_waitcnt lgkmcnt(0)
    """)
    tg = []
    for r in range(16):
        p(f"buffer_load_dwordx4 {vr(8+8*r,4)}, v1, s[12:15], s6 offen")
        p(f"buffer_load_dwordx4 {vr(12+8*r,4)}, v1, s[12:15], s6 offen offset:256")
        p("s_add_u32 s6, s6, 4096")
        tg.append(p.vmtag())
    for r in range(1, 16):
        p.wait_vm(tg[r])
        for k in range(4):
            p(f"v_pk_add_f32 {vr(8+2*k,2)}, {vr(8+2*k,2)}, {vr(8+8*r+2*k,2)}")
    for k in range(8):
        p(f"v_cndmask_b32 {vr(8+k)}, 0, {vr(8+k)}, {'s[20:21]' if k < 4 else 's[22:23]'}")
    for k in range(4):
        p(f"v_cvt_pk_bf16_f32 {vr(4+k)}, {vr(8+2*k)}, {vr(9+2*k)}")
    p(f"""
    buffer_store_dwordx4 v[4:7], v2, s[12:15], s7 offen
    KR_END:
    s_endpgm
    """)

def gen_k2(p):
    S_X, S_W2, S_WS, S_WO, S_OUT, S_B2 = 4, 8, 12, 16, 20, 24
    S_WV, S_WBLK, S_RB, S_CS = 28, 29, 30, 31
    S_H0, S_H1, S_W2O, S_T0, S_T1, S_T2, S_XO = 32, 33, 34, 35, 36, 37, 38
    S_MLO, S_MHI = 40, 42
    V_L, V_A0, V_A1, V_WOFF, V_L16, V_RW, V_RR, V_XO = 1, 2, 3, 4, 5, 6, 7, 8
    V_XD, V_B2 = 12, 20
    ACC, PQ, KV, OT, OB, WOF = 32, 96, 160, 192, 224, 240
    TM = 24
    p(f"""
    s_cmp_ge_u32 s2, 224
    s_cbranch_scc1 K2_END
    """)
    stamp_init(p, 9)
    p(f"""
    s_load_dwordx2 {sr(S_X,2)}, s[0:1], 0
    s_load_dwordx2 {sr(S_WO,2)}, s[0:1], 16
    s_load_dwordx4 s[44:47], s[0:1], 48
    s_load_dwordx2 {sr(S_OUT,2)}, s[0:1], 64
    s_load_dwordx2 {sr(S_WS,2)}, s[0:1], 80
    v_and_b32 {vr(V_L)}, 63, v0
    v_lshrrev_b32 v24, 6, v0
    v_lshrrev_b32 v25, 3, {vr(V_L)}
    v_readfirstlane_b32 {sr(S_WV)}, v24
    v_and_b32 v26, 7, {vr(V_L)}
    v_bfe_u32 v27, {vr(V_L)}, 4, 1
    v_lshlrev_b32 v27, 2, v27
    v_xor_b32 v27, v27, v26
    v_lshlrev_b32 v27, 4, v27
    v_mov_b32 v28, 896
    v_mad_u32_u24 {vr(V_WOFF)}, v25, v28, v27
    v_lshlrev_b32 v27, 4, v26
    v_mad_u32_u24 {vr(V_XO)}, v25, v28, v27
    v_lshlrev_b32 {vr(V_L16)}, 4, {vr(V_L)}
    s_and_b32 {sr(S_T0)}, s2, 7
    s_lshr_b32 {sr(S_T1)}, s2, 3
    s_mul_i32 {sr(S_RB)}, {sr(S_T1)}, 37
    s_lshr_b32 {sr(S_RB)}, {sr(S_RB)}, 8
    s_mul_i32 {sr(S_CS)}, {sr(S_RB)}, 7
    s_sub_u32 {sr(S_CS)}, {sr(S_T1)}, {sr(S_CS)}
    s_lshl_b32 {sr(S_T0)}, {sr(S_T0)}, 2
    s_add_u32 {sr(S_RB)}, {sr(S_RB)}, {sr(S_T0)}
    s_mul_i32 {sr(S_WBLK)}, {sr(S_WV)}, {WREG}
    s_mov_b32 {sr(S_X+2)}, 1835008
    s_mov_b32 {sr(S_X+3)}, 0x00020000
    s_mov_b32 {sr(S_W2+2)}, 1605632
    s_mov_b32 {sr(S_W2+3)}, 0x00020000
    s_mov_b32 {sr(S_WS+2)}, {WS_SIZE}
    s_mov_b32 {sr(S_WS+3)}, 0x00020000
    s_mov_b32 {sr(S_WO+2)}, 401408
    s_mov_b32 {sr(S_WO+3)}, 0x00020000
    s_mov_b32 {sr(S_OUT+2)}, 1835008
    s_mov_b32 {sr(S_OUT+3)}, 0x00020000
    s_mov_b32 {sr(S_B2+2)}, 896
    s_mov_b32 {sr(S_B2+3)}, 0x00020000
    s_mov_b32 {sr(S_MLO)}, -1
    s_mov_b32 {sr(S_MLO+1)}, 0
    s_mov_b32 {sr(S_MHI)}, 0
    s_mov_b32 {sr(S_MHI+1)}, -1
    s_lshl_b32 {sr(S_T0)}, {sr(S_WV)}, 13
    s_add_u32 {sr(S_T0)}, {sr(S_T0)}, {WS_KVF}
    s_mul_i32 {sr(S_T1)}, {sr(S_RB)}, {2*56*512}
    s_mul_i32 {sr(S_T2)}, {sr(S_WV)}, {14*512}
    s_add_u32 {sr(S_T1)}, {sr(S_T1)}, {sr(S_T2)}
    s_add_u32 {sr(S_T1)}, {sr(S_T1)}, {WS_PQ}
    s_waitcnt lgkmcnt(0)
    s_mov_b64 {sr(S_W2,2)}, s[44:45]
    s_mov_b64 {sr(S_B2,2)}, s[46:47]
    """)
    stamp(p, 9)
    P0 = (0, 3, 7, 10)
    htag = []
    for hh in range(4):
        for ks in range(2):
            o = (2 * hh + ks) * 1024
            if o == 4096:
                p(f"s_add_u32 {sr(S_T0)}, {sr(S_T0)}, 4096")
            p(f"buffer_load_dwordx4 {vr(KV+8*hh+4*ks,4)}, {vr(V_L16)}, {sr(S_WS,4)}, {sr(S_T0)} offen offset:{o%4096}")
        for rt in range(2):
            p(f"s_add_u32 {sr(S_T2)}, {sr(S_T1)}, {rt*56*512 + P0[hh]*512}")
            for ks in range(2):
                p(f"buffer_load_dwordx4 {vr(PQ+16*hh+8*rt+4*ks,4)}, {vr(V_L16)}, {sr(S_WS,4)}, {sr(S_T2)} offen offset:{ks*1024}")
        htag.append(p.vmtag())
    p(f"""
    s_mul_i32 {sr(S_T0)}, {sr(S_WV)}, {112*896}
    s_lshl_b32 {sr(S_T1)}, {sr(S_CS)}, 7
    s_add_u32 {sr(S_T0)}, {sr(S_T0)}, {sr(S_T1)}
    s_mul_i32 {sr(S_W2O)}, {sr(S_WV)}, {448*896}
    s_add_u32 {sr(S_W2O)}, {sr(S_W2O)}, {sr(S_T1)}
    s_sub_u32 {sr(S_W2O)}, {sr(S_W2O)}, 7168
    s_mul_i32 {sr(S_H0)}, {sr(S_RB)}, {2*112*1024}
    s_mul_i32 {sr(S_T2)}, {sr(S_WV)}, {28*1024}
    s_add_u32 {sr(S_H0)}, {sr(S_H0)}, {sr(S_T2)}
    s_add_u32 {sr(S_H1)}, {sr(S_H0)}, {112*1024}
    s_lshl_b32 {sr(S_XO)}, {sr(S_RB)}, 2
    s_add_u32 {sr(S_XO)}, {sr(S_XO)}, {sr(S_WV)}
    s_mul_i32 {sr(S_XO)}, {sr(S_XO)}, {16*896}
    s_add_u32 {sr(S_XO)}, {sr(S_XO)}, {sr(S_T1)}
    """)
    wot = []
    for i in range(14):
        p(f"s_add_u32 m0, {sr(S_WBLK)}, {i*1024}")
        p(f"buffer_load_dwordx4 {vr(V_WOFF)}, {sr(S_WO,4)}, {sr(S_T0)} offen lds")
        p(f"s_add_u32 {sr(S_T0)}, {sr(S_T0)}, 7168")
        wot.append(p.vmtag())
    p(f"""
    v_lshrrev_b32 v24, 5, {vr(V_L)}
    v_bfe_u32 v27, {vr(V_L)}, 2, 2
    v_lshl_add_u32 {vr(V_A0)}, v24, 2, v27
    v_lshlrev_b32 {vr(V_A0)}, 7, {vr(V_A0)}
    v_bfe_u32 v27, {vr(V_L)}, 3, 1
    v_lshl_add_u32 {vr(V_A0)}, v27, 6, {vr(V_A0)}
    v_bfe_u32 v27, {vr(V_L)}, 4, 1
    v_lshl_add_u32 {vr(V_A0)}, v27, 5, {vr(V_A0)}
    v_and_b32 v27, 3, {vr(V_L)}
    v_lshl_add_u32 {vr(V_A0)}, v27, 3, {vr(V_A0)}
    v_add_u32 {vr(V_A0)}, {sr(S_WBLK)}, {vr(V_A0)}
    v_xor_b32 {vr(V_A1)}, 64, {vr(V_A0)}
    v_and_b32 v27, 31, {vr(V_L)}
    v_xor_b32 v28, v26, v24
    v_lshlrev_b32 v28, 4, v28
    v_lshl_add_u32 {vr(V_RW)}, v27, 8, v28
    v_add_u32 {vr(V_RW)}, {sr(S_WBLK)}, {vr(V_RW)}
    v_lshlrev_b32 v28, 1, v26
    v_xor_b32 v28, v28, v25
    v_lshlrev_b32 v28, 4, v28
    v_lshl_add_u32 {vr(V_RR)}, v25, 8, v28
    s_lshl_b32 {sr(S_T0)}, {sr(S_WV)}, 12
    v_add_u32 {vr(V_RR)}, {sr(S_T0)}, {vr(V_RR)}
    v_lshlrev_b32 v28, 4, v26
    """)
    st = dict(next=0, waited=0)
    free_regs = [("a", 224 + 8 * i) for i in range(4)]
    free_pc = list(range(16, 40, 2))
    unit = {}
    def rr(kind, a, n):
        return vr(a, n) if kind == "v" else ar(a, n)
    def pump(maxn=99):
        n = 0
        while st["next"] < 28 and free_regs and free_pc and p.vm - st["waited"] <= 58 and n < maxn:
            k = st["next"]; st["next"] += 1; n += 1
            rg = free_regs.pop(0); pc = free_pc.pop(0)
            for t in range(2):
                p(f"s_add_u32 m0, {sr(S_WBLK)}, {(pc+t)*1024}")
                p(f"s_add_u32 {sr(S_W2O)}, {sr(S_W2O)}, 7168")
                p(f"buffer_load_dwordx4 {vr(V_WOFF)}, {sr(S_W2,4)}, {sr(S_W2O)} offen lds")
            wtag = p.vmtag()
            if k % 4 == 0 and k:
                p(f"s_add_u32 {sr(S_H0)}, {sr(S_H0)}, 4096")
                p(f"s_add_u32 {sr(S_H1)}, {sr(S_H1)}, 4096")
            p(f"buffer_load_dwordx4 {rr(rg[0],rg[1],4)}, {vr(V_L16)}, {sr(S_WS,4)}, {sr(S_H0)} offen offset:{(k%4)*1024}")
            p(f"buffer_load_dwordx4 {rr(rg[0],rg[1]+4,4)}, {vr(V_L16)}, {sr(S_WS,4)}, {sr(S_H1)} offen offset:{(k%4)*1024}")
            unit[k] = (rg, pc, wtag, p.vmtag())
    def wvm(tag):
        if tag > st["waited"]:
            p.wait_vm(tag); st["waited"] = tag
    pump()
    stamp(p, 9)
    for hh in range(4):
        wvm(htag[hh])
        stamp(p, 9)
        for ks in range(2):
            for rt in range(2):
                c = "0" if ks == 0 else vr(OT + 16 * rt, 16)
                p(f"v_mfma_f32_32x32x16_bf16 {vr(OT+16*rt,16)}, {vr(KV+8*hh+4*ks,4)}, {vr(PQ+16*hh+8*rt+4*ks,4)}, {c}")
        wvm(wot[P0[hh] + 3])
        for q in range(2):
            for ct in range(2):
                for t in range(2):
                    p(f"ds_read_b64_tr_b16 {vr(WOF+8*q+4*ct+2*t,2)}, {vr(V_A0+ct)} offset:{(P0[hh]+2*q+t)*1024}")
        free_regs += [("v", PQ + 16 * hh), ("v", PQ + 16 * hh + 8), ("v", KV + 8 * hh)]
        zi = 0 if hh & 1 else 12
        for rt in range(2):
            o = OT + 16 * rt
            p(f"v_mov_b32 {vr(TM)}, {vr(o+zi)}")
            p(f"v_mov_b32 {vr(TM+1)}, {vr(o+zi)}")
            p(f"v_permlane32_swap_b32 {vr(TM)}, {vr(TM+1)}")
            d = TM if hh & 1 else TM + 1
            p(f"v_add_f32 {vr(TM+2)}, 0x358637bd, {vr(d)}")
            p(f"v_rcp_f32 {vr(TM+2)}, {vr(TM+2)}")
            p(f"v_cndmask_b32 {vr(o+zi)}, {vr(o+zi)}, 0, {sr(S_MLO if hh & 1 else S_MHI,2)}")
            for i in range(8):
                p(f"v_pk_mul_f32 {vr(o+2*i,2)}, {vr(o+2*i,2)}, {vr(TM+2,2)} op_sel_hi:[1,0]")
            for i in range(8):
                p(f"v_cvt_pk_bf16_f32 {vr(OB+8*rt+i)}, {vr(o+2*i)}, {vr(o+2*i+1)}")
        pump()
        p("s_waitcnt lgkmcnt(0)")
        for q in range(2):
            for ct in range(2):
                for rt in range(2):
                    a = ACC + 32 * ct + 16 * rt
                    c = "0" if (hh == 0 and q == 0) else vr(a, 16)
                    p(f"v_mfma_f32_32x32x16_bf16 {vr(a,16)}, {vr(WOF+8*q+4*ct,4)}, {vr(OB+8*rt+4*q,4)}, {c}")
    free_regs += [("v", OT + 8 * i) for i in range(4)] + [("v", OB), ("v", OB + 8)]
    def dump(base):
        for ct in range(2):
            for a in range(4):
                p(f"v_xor_b32 {vr(TM+(a&1))}, {(8*ct+2*a)*16}, {vr(V_RW)}")
                for rt in range(2):
                    p(f"ds_write_b128 {vr(TM+(a&1))}, {vr(ACC+32*ct+16*rt+4*a,4)} offset:{base+rt*8192}")
    stamp(p, 9)
    pump()
    dump(0)
    free_regs += [("v", WOF), ("v", WOF + 8)]
    stamp(p, 9)
    def frag_reads(k):
        rg, pc, wtag, _ = unit[k]
        wvm(wtag)
        for ct in range(2):
            for t in range(2):
                p(f"ds_read_b64_tr_b16 {ar(8*k+4*ct+2*t,2)}, {vr(V_A0+ct)} offset:{(pc+t)*1024}")
        return p.lgtag()
    ft = {0: frag_reads(0), 1: frag_reads(1)}
    xtag = None
    for k in range(28):
        rg, pc, wtag, htg = unit[k]
        p.wait_lg(ft[k])
        free_pc.append(pc)
        wvm(htg)
        if k % 4 == 0: stamp(p, 9)
        for ct in range(2):
            for rt in range(2):
                a = ACC + 32 * ct + 16 * rt
                c = "0" if k == 0 else vr(a, 16)
                p(f"v_mfma_f32_32x32x16_bf16 {vr(a,16)}, {ar(8*k+4*ct,4)}, {rr(rg[0],rg[1]+4*rt,4)}, {c}")
                if ct == 0 and rt == 0:
                    pump(1)
                if ct == 0 and rt == 1 and k + 2 < 28:
                    ft[k + 2] = frag_reads(k + 2)
        free_regs.append(rg)
        if st["next"] == 28 and xtag is None:
            p(f"buffer_load_dwordx4 {vr(V_XD,4)}, {vr(V_XO)}, {sr(S_X,4)}, {sr(S_XO)} offen")
            p(f"s_add_u32 {sr(S_T0)}, {sr(S_XO)}, 7168")
            p(f"s_lshl_b32 {sr(S_T1)}, {sr(S_CS)}, 7")
            p(f"buffer_load_dwordx4 {vr(V_XD+4,4)}, {vr(V_XO)}, {sr(S_X,4)}, {sr(S_T0)} offen")
            p(f"buffer_load_dwordx4 {vr(V_B2,4)}, v28, {sr(S_B2,4)}, {sr(S_T1)} offen")
            xtag = p.vmtag()
    stamp(p, 9)
    dump(16384)
    p("s_waitcnt lgkmcnt(0)")
    p("s_barrier")
    stamp(p, 9)
    R = 32
    p(f"v_xor_b32 {vr(TM)}, 16, {vr(V_RR)}")
    p(f"v_add_u32 {vr(TM+1)}, {2*WREG}, {vr(V_RR)}")
    p(f"v_add_u32 {vr(TM+2)}, {2*WREG}, {vr(TM)}")
    tg = {}
    for ps in range(2):
        for arr in range(2):
            for sw in range(4):
                for c in range(2):
                    a = (V_RR, TM, TM + 1, TM + 2)[c + 2 * (sw >> 1)]
                    p(f"ds_read_b128 {vr(R+64*ps+32*arr+8*sw+4*c,4)}, {vr(a)} offset:{(sw&1)*WREG + arr*16384 + ps*2048}")
            tg[ps, arr] = p.lgtag()
    B = 160
    X = 168
    E = 176
    wvm(xtag)
    for i in range(4):
        p(f"v_lshlrev_b32 {vr(B+2*i)}, 16, {vr(V_B2+i)}")
        p(f"v_and_b32 {vr(B+2*i+1)}, 0xffff0000, {vr(V_B2+i)}")
    p(f"s_mov_b32 {sr(S_T1)}, {hex(LOG2E | 0x80000000)}")
    p(f"s_mov_b32 s44, 1.0")
    p(f"s_mov_b32 s45, 1.0")
    for ps in range(2):
        for arr in range(2):
            p.wait_lg(tg[ps, arr])
            b = R + 64 * ps + 32 * arr
            for i in range(4):
                p(f"v_pk_add_f32 {vr(b+2*i,2)}, {vr(b+2*i,2)}, {vr(b+8+2*i,2)}")
                p(f"v_pk_add_f32 {vr(b+16+2*i,2)}, {vr(b+16+2*i,2)}, {vr(b+24+2*i,2)}")
            for i in range(4):
                p(f"v_pk_add_f32 {vr(b+2*i,2)}, {vr(b+2*i,2)}, {vr(b+16+2*i,2)}")
        s_ = R + 64 * ps; o_ = s_ + 32
        for i in range(4):
            p(f"v_pk_add_f32 {vr(o_+2*i,2)}, {vr(o_+2*i,2)}, {vr(B+2*i,2)}")
        for i in range(8):
            p(f"v_mul_f32 {vr(E+i)}, {sr(S_T1)}, {vr(o_+i)}")
        for i in range(8):
            p(f"v_exp_f32 {vr(E+i)}, {vr(E+i)}")
        for i in range(4):
            p(f"v_lshlrev_b32 {vr(X+2*i)}, 16, {vr(V_XD+4*ps+i)}")
            p(f"v_and_b32 {vr(X+2*i+1)}, 0xffff0000, {vr(V_XD+4*ps+i)}")
        for i in range(4):
            p(f"v_pk_add_f32 {vr(E+2*i,2)}, {vr(E+2*i,2)}, s[44:45]")
        for i in range(8):
            p(f"v_rcp_f32 {vr(E+i)}, {vr(E+i)}")
        for i in range(4):
            p(f"v_pk_mul_f32 {vr(o_+2*i,2)}, {vr(o_+2*i,2)}, {vr(s_+2*i,2)}")
        for i in range(4):
            p(f"v_pk_fma_f32 {vr(X+2*i,2)}, {vr(o_+2*i,2)}, {vr(E+2*i,2)}, {vr(X+2*i,2)}")
        for i in range(4):
            p(f"v_cvt_pk_bf16_f32 {vr(s_+i)}, {vr(X+2*i)}, {vr(X+2*i+1)}")
        so = sr(S_XO) if ps == 0 else sr(S_T0)
        p(f"buffer_store_dwordx4 {vr(s_,4)}, {vr(V_XO)}, {sr(S_OUT,4)}, {so} offen")
    stamp_out(p, 9, S_WS, sr(S_WV), 0xB00000, 10)
    p("""
    K2_END:
    s_endpgm
    """)

def kernel_block(name, body, vg=512, acc=256):
    txt = f""".globl {name}
.p2align 8
.type {name},@function
{name}:
{body}
"""
    desc = f""".amdhsa_kernel {name}
  .amdhsa_next_free_vgpr {vg}
  .amdhsa_next_free_sgpr 102
  .amdhsa_accum_offset {acc}
  .amdhsa_group_segment_fixed_size 0
  .amdhsa_kernarg_size 88
  .amdhsa_user_sgpr_count 2
  .amdhsa_user_sgpr_kernarg_segment_ptr 1
  .amdhsa_system_sgpr_workgroup_id_x 1
.end_amdhsa_kernel
"""
    return txt, desc

def build(kernels, out):
    hdr = open(f"cdna_kernels/{NAME}.s.ref").read().split("; @launch")[0]
    launch = ""
    txt = ""; desc = ""
    for name, gen, grid, block, lds, vg, acc in kernels:
        if len(kernels) == 1:
            launch += f"; @launch grid=({grid},1,1) block=({block},1,1) lds={lds}\n"
        else:
            launch += f"; @launch kernel={name} grid=({grid},1,1) block=({block},1,1) lds={lds}\n"
        p = Prog(); gen(p)
        t, d = kernel_block(name, p.text(), vg, acc)
        txt += t; desc += ".p2align 6\n" + d
    s = hdr + launch + '.amdgcn_target "amdgcn-amd-amdhsa--gfx950"\n.text\n' + txt + '.section .rodata,"a"\n' + desc
    open(out, "w").write(s)

if __name__ == "__main__":
    if len(sys.argv) > 1 and sys.argv[1] == "dbg":
        DBG = True
        build([("k1_kernel", gen_k1, 256, 256, 163840, 256, 256), ("kr_kernel", gen_kred, 32, 64, 0, 144, 144),
           ("k2_kernel", gen_k2, 224, 256, 163840, 512, 256)], "v1dbg.s")
        sys.exit(0)
    build([(NAME + "_kernel", gen_k1, 256, 256, 163840, 256, 256)], "k1.s")
    build([("k1_kernel", gen_k1, 256, 256, 163840, 256, 256), ("kr_kernel", gen_kred, 32, 64, 0, 144, 144),
           ("k2_kernel", gen_k2, 224, 256, 163840, 512, 256)], "v1.s")
```

```python
import sys
sys.path.insert(0, "gen")
from g2 import *
import g2
OPT.update(fl1=10, kf1=12, pbi=8, pbc=11, n0=6, capA=4, capB=6, rchk=10)
S_FO, S_KFO = 0, 1
V_PK, V_PF = 9, 29
V_H, V_RW, V_RR, V_XO, V_PA = 136, 140, 141, 142, 143
S_PRV = S_NXT
def post(val, soff):
    return f"v_mov_b32 {vr(V_FT)}, {val}\nbuffer_store_dword {vr(V_FT)}, off, {sr(S_WS,4)}, {soff} sc1"
def wpos(i): return 16 if i == 13 else pos(i)

def prologue(p, cx):
    p("s_cmp_ge_u32 s2, 256\ns_cbranch_scc1 L_END")
    stamp_init(p)
    for s, o in ((S_X, 0), (S_WQKV, 8), (S_WS, 80), (S_W2, 48), (S_WO, 16), (S_W1, 32), (S_B, 40), (S_B2, 56), (S_OUT, 64), (S_DBG, 72)):
        p(f"s_load_dwordx2 {sr(s,2)}, s[0:1], {o}")
    p(f"""
    v_and_b32 {vr(V_L)}, 63, v0
    v_lshrrev_b32 v108, 6, v0
    v_lshrrev_b32 v109, 3, {vr(V_L)}
    v_readfirstlane_b32 {sr(S_WV)}, v108
    v_and_b32 v110, 7, {vr(V_L)}
    v_lshrrev_b32 v111, 4, {vr(V_L)}
    v_xor_b32 v112, v110, v111
    v_lshlrev_b32 v112, 4, v112
    v_mov_b32 v113, 896
    v_mad_u32_u24 v96, v109, v113, v112
    v_xor_b32 v97, 64, v96
    v_add_u32 v98, {14336-2048}, v96
    v_add_u32 v99, {21504-3072}, v97
    v_add_u32 v97, {7168-1024}, v97
    s_and_b32 {sr(S_T0)}, s2, 7
    s_lshr_b32 {sr(S_T1)}, s2, 3
    s_and_b32 {sr(S_T2)}, {sr(S_T1)}, 3
    s_lshr_b32 {sr(S_CS)}, {sr(S_T1)}, 2
    s_lshl_b32 {sr(S_RB)}, {sr(S_T0)}, 2
    s_add_u32 {sr(S_RB)}, {sr(S_RB)}, {sr(S_T2)}
    s_lshr_b32 {sr(S_R)}, {sr(S_T0)}, 1
    s_lshl_b32 {sr(S_R)}, {sr(S_R)}, 2
    s_add_u32 {sr(S_R)}, {sr(S_R)}, {sr(S_T2)}
    s_and_b32 {sr(S_J)}, {sr(S_T0)}, 1
    s_lshl_b32 {sr(S_J)}, {sr(S_J)}, 3
    s_add_u32 {sr(S_J)}, {sr(S_J)}, {sr(S_CS)}
    s_lshl_b32 {sr(S_T1)}, {sr(S_T2)}, 1
    s_add_u32 {sr(S_T1)}, {sr(S_T1)}, {sr(S_CS)}
    s_sub_u32 {sr(S_M)}, {sr(S_T1)}, 7
    s_cselect_b32 {sr(S_M)}, {sr(S_T1)}, {sr(S_M)}
    s_mul_i32 {sr(S_WBLK)}, {sr(S_WV)}, {WREG}
    s_lshl_b32 {sr(S_CUR)}, {sr(S_R)}, 2
    s_add_u32 {sr(S_CUR)}, {sr(S_CUR)}, {sr(S_WV)}
    s_mul_i32 {sr(S_ST)}, {sr(S_CUR)}, 28672
    s_mov_b32 {sr(S_X+2)}, 1835008
    s_mov_b32 {sr(S_X+3)}, 0x00020000
    s_mov_b32 {sr(S_WS+2)}, {WS_SIZE}
    s_mov_b32 {sr(S_WS+3)}, 0x00020000
    """)
    for s in range(1, 7):
        p(f"s_add_u32 {sr(S_M+s)}, {sr(S_M+s-1)}, 1\ns_cmp_eq_u32 {sr(S_M+s)}, 7\ns_cselect_b32 {sr(S_M+s)}, 0, {sr(S_M+s)}")
    p("s_waitcnt lgkmcnt(0)")
    stamp(p)
    vm0 = p.vm
    p(f"""
    s_cmp_lg_u32 s2, 0
    s_cbranch_scc1 L_NZ
    v_lshrrev_b32 v112, 2, {vr(V_L)}
    v_and_b32 v113, 3, {vr(V_L)}
    v_lshlrev_b32 v112, 7, v112
    v_lshl_add_u32 v112, v113, 4, v112
    v_mov_b32 v116, 0
    v_mov_b32 v117, 0
    v_mov_b32 v118, 0
    v_mov_b32 v119, 0
    s_mul_i32 {sr(S_T0)}, {sr(S_WV)}, 6144
    s_add_u32 {sr(S_T0)}, {sr(S_T0)}, {WS_FLG}
    buffer_store_dwordx4 v[116:119], v112, {sr(S_WS,4)}, {sr(S_T0)} offen sc1
    buffer_store_dwordx4 v[116:119], v112, {sr(S_WS,4)}, {sr(S_T0)} offen offset:2048 sc1
    s_add_u32 {sr(S_T0)}, {sr(S_T0)}, 4096
    buffer_store_dwordx4 v[116:119], v112, {sr(S_WS,4)}, {sr(S_T0)} offen sc1
    L_NZ:
    """)
    p.vm = vm0
    xt = []
    for s in range(7):
        p(f"s_lshl_b32 {sr(S_T0)}, {sr(S_M+s)}, 7\ns_add_u32 {sr(S_T0)}, {sr(S_T0)}, {sr(S_ST)}\ns_add_u32 m0, {sr(S_WBLK)}, {(12+4*s)*1024}")
        for q in range(4):
            p(f"buffer_load_dwordx4 {vr(96+q)}, {sr(S_X,4)}, {sr(S_T0)} offen offset:{1024*q} lds")
        xt.append(p.vmtag())
    p(f"""
    v_lshl_add_u32 {vr(V_ROW)}, {sr(S_WV)}, 3, v109
    v_lshrrev_b32 v112, 2, v110
    v_and_b32 v113, 1, v111
    v_xor_b32 v112, v112, v113
    v_and_b32 v113, 3, v110
    v_lshlrev_b32 v113, 4, v113
    v_lshl_add_u32 {vr(V_TP)}, v112, 6, v113
    s_movk_i32 {sr(S_T0)}, 2688
    s_movk_i32 {sr(S_K1)}, 896
    v_mad_u32_u24 {vr(V_WA)}, {vr(V_ROW)}, {sr(S_T0)}, v113
    v_mad_u32_u24 {vr(V_WA)}, v112, {sr(S_K1)}, {vr(V_WA)}
    s_mov_b64 {sr(S_W,2)}, {sr(S_WQKV,2)}
    s_mov_b32 {sr(S_W+2)}, 1204224
    s_mov_b32 {sr(S_W+3)}, 0x00020000
    s_mul_i32 {sr(S_T0)}, {sr(S_J)}, 56
    s_and_b32 {sr(S_K2)}, {sr(S_J)}, 1
    s_lshl_b32 {sr(S_K2)}, {sr(S_K2)}, 3
    s_sub_u32 {sr(S_T0)}, {sr(S_T0)}, {sr(S_K2)}
    s_add_u32 {sr(S_T0)}, {sr(S_T0)}, 896
    v_add_u32 {vr(V_WA)}, {sr(S_T0)}, {vr(V_WA)}
    v_add_u32 {vr(V_WB)}, {32*2688-1024}, {vr(V_WA)}
    """)
    for s in range(7):
        p(f"s_mul_i32 {sr(S_C+s)}, {sr(S_M+s)}, {64*2688}")
    wt = {}
    def wpair(s):
        p(f"s_add_u32 m0, {sr(S_WBLK)}, {2*s*1024}")
        if s:
            p(f"buffer_load_dwordx4 {vr(V_WB)}, {sr(S_W,4)}, {sr(S_C+s-1)} offen offset:1024 lds")
            wt[2 * s - 1] = p.vmtag()
        p(f"buffer_load_dwordx4 {vr(V_WA)}, {sr(S_W,4)}, {sr(S_C+s)} offen lds")
        wt[2 * s] = p.vmtag()
    for s in range(6): wpair(s)
    p(f"s_lshl_b32 {sr(S_T1)}, {sr(S_T1)}, 13")
    for q in range(8):
        p(f"s_add_u32 {sr(S_TAB+q)}, {sr(S_T1)}, {q*8192}\ns_and_b32 {sr(S_TAB+q)}, {sr(S_TAB+q)}, 0xffff")
    p(f"s_add_u32 {sr(S_T1)}, {sr(S_T2)}, {sr(S_CS)}\ns_lshl_b32 {sr(S_T1)}, {sr(S_T1)}, 13")
    for q in range(8, 12):
        p(f"s_add_u32 {sr(S_TAB+q)}, {sr(S_T1)}, {(q-8)*8192}\ns_and_b32 {sr(S_TAB+q)}, {sr(S_TAB+q)}, 0x7fff\ns_or_b32 {sr(S_TAB+q)}, {sr(S_TAB+q)}, 0x10000")
    p(f"""
    s_cmp_eq_u32 {sr(S_CS)}, 7
    s_cselect_b32 {sr(S_W2+2)}, 0, 1605632
    s_mov_b32 {sr(S_W2+3)}, 0x00020000
    s_mov_b32 {sr(S_B+3)}, 0x00020000
    s_mov_b32 {sr(S_OUT+2)}, 1835008
    s_mov_b32 {sr(S_OUT+3)}, 0x00020000
    s_mov_b32 {sr(S_B2+2)}, 896
    s_mov_b32 {sr(S_B2+3)}, 0x00020000
    s_mov_b32 {sr(S_DBG+2)}, 256
    s_mov_b32 {sr(S_DBG+3)}, 0x00020000
    s_lshl_b32 {sr(S_FO)}, {sr(S_CUR)}, 7
    s_lshl_b32 {sr(S_T0)}, {sr(S_J)}, 2
    s_add_u32 {sr(S_FO)}, {sr(S_FO)}, {sr(S_T0)}
    s_add_u32 {sr(S_FO)}, {sr(S_FO)}, {WS_FLG+FL_ROW}
    s_add_u32 {sr(S_KFO)}, {sr(S_T0)}, {sr(S_WV)}
    s_lshl_b32 {sr(S_KFO)}, {sr(S_KFO)}, 7
    s_lshl_b32 {sr(S_T0)}, {sr(S_R)}, 2
    s_add_u32 {sr(S_KFO)}, {sr(S_KFO)}, {sr(S_T0)}
    s_add_u32 {sr(S_KFO)}, {sr(S_KFO)}, {WS_FLG+FL_KF1}
    s_mul_i32 {sr(S_T0)}, {sr(S_WV)}, 14336
    s_lshl_b32 {sr(S_T1)}, {sr(S_CS)}, 7
    s_add_u32 {sr(S_T0)}, {sr(S_T0)}, {sr(S_T1)}
    v_mad_u32_u24 {vr(V_W2)}, v109, {sr(S_K1)}, {vr(V_TP)}
    v_add_u32 {vr(V_W2)}, {sr(S_T0)}, {vr(V_W2)}
    v_add_u32 {vr(V_W2+1)}, {7168-1024}, {vr(V_W2)}
    v_add_u32 {vr(V_W2+2)}, {57344-2048}, {vr(V_W2)}
    v_add_u32 {vr(V_W2+3)}, {64512-3072}, {vr(V_W2)}
    v_lshrrev_b32 v112, 5, {vr(V_L)}
    v_bfe_u32 v113, {vr(V_L)}, 2, 2
    v_lshlrev_b32 v114, 7, v113
    v_bfe_u32 v115, {vr(V_L)}, 3, 1
    v_lshl_add_u32 v114, v115, 6, v114
    v_bfe_u32 v115, {vr(V_L)}, 4, 1
    v_lshl_add_u32 v114, v115, 5, v114
    v_and_b32 v115, 3, {vr(V_L)}
    v_lshl_add_u32 v114, v115, 3, v114
    v_mul_u32_u24 {vr(V_AW)}, {WREG}, v112
    v_add_u32 {vr(V_AW)}, {vr(V_AW)}, v114
    v_xor_b32 {vr(V_AW+1)}, 64, {vr(V_AW)}
    v_add_u32 {vr(V_AW+2)}, {2*WREG}, {vr(V_AW)}
    v_add_u32 {vr(V_AW+3)}, {2*WREG}, {vr(V_AW+1)}
    v_lshl_add_u32 {vr(V_A0)}, v112, 9, v114
    v_add_u32 {vr(V_A0)}, {sr(S_WBLK)}, {vr(V_A0)}
    v_xor_b32 {vr(V_A0+1)}, 64, {vr(V_A0)}
    v_bfe_u32 v113, {vr(V_L)}, 1, 3
    v_xor_b32 v113, v113, v112
    v_lshlrev_b32 v100, 4, v113
    v_lshl_add_u32 v100, v110, 7, v100
    v_bfe_u32 v113, {vr(V_L)}, 3, 2
    v_lshl_add_u32 v100, v113, 10, v100
    s_add_u32 {sr(S_T0)}, {sr(S_WBLK)}, {12*1024}
    v_add_u32 v100, {sr(S_T0)}, v100
    v_xor_b32 v101, 32, v100
    v_xor_b32 v102, 64, v100
    v_xor_b32 v103, 96, v100
    v_lshlrev_b32 {vr(V_L16)}, 4, {vr(V_L)}
    v_and_b32 v113, 31, {vr(V_L)}
    v_lshlrev_b32 {vr(V_BO)}, 1, v113
    v_xor_b32 v114, v110, v112
    v_lshlrev_b32 v114, 4, v114
    v_lshl_add_u32 {vr(V_RW)}, v113, 8, v114
    v_add_u32 {vr(V_RW)}, {sr(S_WBLK)}, {vr(V_RW)}
    v_lshlrev_b32 v114, 1, v110
    v_xor_b32 v114, v114, v109
    v_lshlrev_b32 v114, 4, v114
    v_lshl_add_u32 {vr(V_RR)}, v109, 8, v114
    s_lshl_b32 {sr(S_T0)}, {sr(S_WV)}, 12
    v_add_u32 {vr(V_RR)}, {sr(S_T0)}, {vr(V_RR)}
    v_lshlrev_b32 v114, 4, v110
    v_mad_u32_u24 {vr(V_XO)}, v109, {sr(S_K1)}, v114
    v_and_b32 v114, 15, {vr(V_L)}
    v_lshlrev_b32 v114, 2, v114
    v_bfe_u32 v115, {vr(V_L)}, 4, 1
    v_lshl_add_u32 {vr(V_PA)}, v115, 7, v114
    s_mul_i32 {sr(S_T0)}, {sr(S_RB)}, {2*112*1024}
    s_lshl_b32 {sr(S_T1)}, {sr(S_WV)}, 10
    s_add_u32 {sr(S_T0)}, {sr(S_T0)}, {sr(S_T1)}
    v_add_u32 {vr(V_H)}, {sr(S_T0)}, {vr(V_L16)}
    v_add_u32 {vr(V_H+1)}, {112*1024}, {vr(V_H)}
    v_add_u32 {vr(V_H+2)}, 4096, {vr(V_H)}
    v_add_u32 {vr(V_H+3)}, 4096, {vr(V_H+1)}
    s_mov_b32 {sr(S_LN2)}, 0x3f803f80
    s_mov_b32 {sr(S_K1)}, 0x00003f80
    s_mov_b32 {sr(S_K2)}, 0x3f800000
    s_mov_b32 {sr(S_EPS)}, 0x35c1a2a0
    v_mov_b32 v104, 0
    v_mov_b32 v105, 0
    v_mov_b32 v106, 0
    v_mov_b32 v107, 0
    """)
    p(next_h(sr(S_J)))
    for i in range(V_B0, V_XA + 4):
        p(f"v_mov_b32 {vr(i)}, 0")
    def stats(v):
        for i in range(16):
            x = V_X + 16 * v + i
            p(f"v_dot2c_f32_bf16 {vr(104+(i&1))}, {sr(S_LN2)}, {vr(x)}")
            p(f"v_dot2c_f32_bf16 {vr(106+(i&1))}, {vr(x)}, {vr(x)}")
    def freed(s):
        if s == 0: wpair(6)
        if s >= 2: w2_dma_block(p, cx, s - 2, s - 2)
    stamp(p)
    lt = []
    for v in range(7):
        p.wait_vm(xt[v])
        if v == 0:
            vm0 = p.vm
            p(f"""
            s_cmp_lg_u32 s2, 0
            s_cbranch_scc1 L_NC
            v_mov_b32 v116, 1
            s_lshl_b32 {sr(S_T0)}, {sr(S_WV)}, 2
            buffer_store_dword v116, off, {sr(S_DBG,4)}, {sr(S_T0)} sc1
            L_NC:
            """)
            p.vm = vm0
        for k in range(4):
            p(f"ds_read_b128 {vr(V_X+16*v+4*k,4)}, {vr(100+k)} offset:{v*4096}")
        lt.append(p.lgtag())
        if v >= 1:
            p.wait_lg(lt[v - 1])
            freed(v - 1)
            stats(v - 1)
    p.wait_lg(lt[6])
    freed(6)
    stats(6)
    stamp(p)
    p(f"""
    v_add_f32 v104, v104, v105
    v_add_f32 v106, v106, v107
    v_mov_b32 v105, v104
    v_mov_b32 v107, v106
    v_permlane32_swap_b32 v104, v105
    v_permlane32_swap_b32 v106, v107
    v_add_f32 v104, v104, v105
    v_add_f32 v106, v106, v107
    v_mul_f32 v104, 0x3b124925, v104
    v_mul_f32 v106, 0x3b124925, v106
    v_fma_f32 v106, -v104, v104, v106
    v_max_f32 v106, 0, v106
    v_cvt_pk_bf16_f32 v105, v104, v106
    v_and_b32 v106, 0xffff0000, v105
    v_lshlrev_b32 v104, 16, v105
    v_add_f32 v106, 0x3727c5ac, v106
    v_cvt_pk_bf16_f32 v106, v106, v106
    v_and_b32 v106, 0xffff0000, v106
    v_sqrt_f32 v106, v106
    v_xor_b32 v104, 0x80000000, v104
    v_cvt_pk_bf16_f32 v106, v106, v106
    v_and_b32 v107, 0xffff0000, v106
    v_rcp_f32 {vr(V_RS)}, v107
    v_and_b32 v106, 0xffff, v106
    v_cmp_gt_u32 vcc, 32, {vr(V_L)}
    s_mov_b32 {sr(S_LN2)}, 0x3f317218
    v_mul_f32 {vr(V_RSL)}, {hex(LOG2E)}, {vr(V_RS)}
    v_cndmask_b32 {vr(V_XA)}, 0, v106, vcc
    """)
    p.wait_vm(wt[1])
    p("s_barrier")
    cx.rt = {}
    for e in range(3):
        ring_reads(p, e, 0); ring_reads(p, e, 1)
        cx.rt[e] = p.lgtag()
    return {u: p.vm - t for u, t in wt.items()}

def bias_mfma(h):
    return f"v_mfma_f32_32x32x16_bf16 {vr(V_ACC+16*h,16)}, {vr(V_B0+2*h,4)}, {vr(V_XA,4)}, 0"
def head_save(p, cx, s0, s1, pre=None):
    if pre: p(pre)
    for i in range(16): p(s0(i))
    p(f"s_waitcnt vmcnt({cx.ea('b')})")
    p(bias_mfma(0))
    for i in range(16, 32): p(s1(i))
    p(bias_mfma(1))

def w2_stream(cx, reads, dmas):
    its = []
    rtag = {}
    def R(pr):
        l = w2_read_items(cx, pr, pr % 5)
        def mark(p): rtag[pr] = p.lgtag()
        return l + [F(mark, 0)]
    def D(pr):
        return [F(lambda p: p.wait_lg(rtag[pr - 5]), 1)] + w2_dma_items(cx, pr, pr % 5)
    seq = [R(reads[0])]
    for i in range(1, len(reads)):
        seq.append(R(reads[i]))
        if i - 1 < len(dmas): seq.append(D(dmas[i - 1]))
    for i in range(len(reads) - 1, len(dmas)): seq.append(D(dmas[i]))
    for s in seq: its += s
    return its

def pass0(p, cx, ea):
    dq = []
    for s in range(7): dq += d_items(s)
    n = len(dq) // 28
    g = Gaps(56)
    for e in range(2, 28):
        q = dq[n * e:n * e + n]
        for i, it in enumerate(q): g.put(2 * (e - 2) + (0 if i < n // 2 else 1), it)
    g.put(52, f"""s_add_u32 {sr(S_CUR)}, {sr(S_J)}, 8
    s_cmp_eq_u32 {sr(S_J)}, 7
    s_cselect_b32 {sr(S_CUR)}, 24, {sr(S_CUR)}
    s_cmp_lt_u32 {sr(S_J)}, 7
    s_cselect_b32 {sr(S_CUR)}, {sr(S_J)}, {sr(S_CUR)}
    s_cselect_b64 {sr(S_NB,2)}, {sr(S_WQKV,2)}, {sr(S_W1,2)}
    s_cselect_b32 {sr(S_NSTR)}, 0, 896""")
    g.put(53, f"""s_cmp_lt_u32 {sr(S_J)}, 7
    s_cselect_b32 {sr(S_NBREC)}, 0, 3584
    s_add_u32 {sr(S_NSTR)}, {sr(S_NSTR)}, 2688
    s_mul_i32 {sr(S_NREC)}, {sr(S_NSTR)}, 448
    s_lshl_b32 {sr(S_NCOL)}, {sr(S_CUR)}, 7
    s_mov_b32 {sr(S_NBOFF)}, {sr(S_NCOL)}
    s_lshl_b32 {sr(S_NST2)}, {sr(S_NSTR)}, 6""")
    def conf(p):
        p(f"v_and_b32 v96, 12, {vr(V_PA)}")
        p(f"buffer_load_dword {vr(V_PF)}, v96, {sr(S_DBG,4)}, 0 offen sc1")
        cx.ctag = p.vmtag()
    g.put(54, F(conf, 2))
    g.put(55, f"""s_and_b32 {sr(S_T0)}, {sr(S_J)}, 1
    s_sub_u32 {sr(S_MEV+1)}, {sr(S_T0)}, 1
    s_mov_b32 {sr(S_MEV)}, 0
    s_sub_u32 {sr(S_MOD)}, 0, {sr(S_T0)}
    s_mov_b32 {sr(S_MOD+1)}, 0""")
    def head(p):
        p(bias_mfma(0)); p(bias_mfma(1))
        for it in dq[:2 * n]: p(it)
        stamp(p)
    gen_pass(p, cx, "P0", g, head, ea)

def pass1(p, cx):
    g = Gaps(56)
    A = phi_items(0, 16, 96)
    A.append(f"v_cndmask_b32 {vr(V_SV+16)}, {vr(V_SV+16)}, 1.0, {sr(S_MOD,2)}\nv_cndmask_b32 {vr(V_SV+28)}, {vr(V_SV+28)}, 1.0, {sr(S_MEV,2)}")
    for i in range(0, 8, 2):
        A.append("\n".join(f"v_cvt_pk_bf16_f32 {vr(V_SV+8+k)}, {vr(V_SV+16+2*k)}, {vr(V_SV+17+2*k)}" for k in (i, i + 1)))
    A += f"""v_and_b32 v100, 31, {vr(V_L)}
    v_and_b32 v101, 7, {vr(V_L)}
    v_lshlrev_b32 v100, 7, v100
    v_lshl_add_u32 v100, v101, 4, v100
    v_lshrrev_b32 v101, 5, {vr(V_L)}
    v_lshl_add_u32 v100, v101, 3, v100
    s_add_u32 {sr(S_T0)}, {sr(S_WBLK)}, {SCR}\nv_add_u32 v100, {sr(S_T0)}, v100""".split("\n    ")
    for c in range(8):
        A.append(f"v_xor_b32 {vr(101+(c&1))}, {c*16}, v100\nds_write_b64 {vr(101+(c&1))}, {vr(V_SV+2*c,2)}")
    A.append(F(lambda p: setattr(cx, "kwt", p.lgtag()), 0))
    gi = g.spread(A, 0, cap=OPT["capA"])
    v = 1
    while 2 * (4 * v - 3) <= gi: v += 1
    cx.pre_bar[("P1", v)] = lambda p: p.wait_lg(cx.kwt)
    gb = 2 * (4 * v - 3)
    B = f"""v_lshrrev_b32 v128, 4, {vr(V_L)}
    v_bfe_u32 v129, {vr(V_L)}, 2, 2
    v_lshl_add_u32 v128, v128, 3, v129
    v_lshlrev_b32 v128, 7, v128
    v_bfe_u32 v130, {vr(V_L)}, 1, 1
    v_xor_b32 v129, v129, v130
    v_lshl_add_u32 v128, v129, 4, v128
    v_and_b32 v130, 1, {vr(V_L)}
    v_lshl_add_u32 v128, v130, 3, v128
    v_add_u32 v128, {SCR}, v128
    s_and_b32 {sr(S_T0)}, {sr(S_WV)}, 1\ns_lshl_b32 {sr(S_T0)}, {sr(S_T0)}, 5\nv_xor_b32 v129, {sr(S_T0)}, v128
    s_lshr_b32 {sr(S_T0)}, {sr(S_WV)}, 1\ns_lshl_b32 {sr(S_T0)}, {sr(S_T0)}, 5\ns_add_u32 {sr(S_T0)}, {sr(S_T0)}, 64\nv_xor_b32 v130, {sr(S_T0)}, v128
    v_xor_b32 v128, 64, v129
    v_xor_b32 v131, 64, v130
    v_add_u32 v132, {2*WREG}, v129
    v_add_u32 v133, {2*WREG}, v128
    v_add_u32 v134, {2*WREG}, v130
    v_add_u32 v135, {2*WREG}, v131
    s_lshl_b32 {sr(S_ST)}, {sr(S_J)}, 4\ns_add_u32 {sr(S_ST)}, {sr(S_ST)}, {sr(S_R)}\ns_lshl_b32 {sr(S_ST)}, {sr(S_ST)}, 12
    s_lshl_b32 {sr(S_T0)}, {sr(S_WV)}, 10\ns_add_u32 {sr(S_ST)}, {sr(S_ST)}, {sr(S_T0)}\ns_add_u32 {sr(S_ST)}, {sr(S_ST)}, {WS_KVP}""".split("\n    ")
    g.spread(B, 0, cap=OPT["capA"] + 1, end=gb)
    C = []
    tg = {}
    for m in range(4):
        aa = (129, 128, 130, 131) if m < 2 else (132, 133, 134, 135)
        o = (m & 1) * WREG
        C.append(f"ds_read_b64_tr_b16 {vr(96+8*m,2)}, v{aa[0]} offset:{o}\nds_read_b64_tr_b16 {vr(96+8*m+2,2)}, v{aa[1]} offset:{o+512}")
        C.append(f"ds_read_b64_tr_b16 {vr(96+8*m+4,2)}, v{aa[2]} offset:{o}\nds_read_b64_tr_b16 {vr(96+8*m+6,2)}, v{aa[3]} offset:{o+512}")
        C.append(F(lambda p, m=m: tg.__setitem__(m, p.lgtag()), 0))
    gi = g.spread(C, gb, cap=4)
    for m in range(4):
        def mm(p, m=m):
            p.wait_lg(tg[m])
            p(f"v_mfma_f32_16x16x32_bf16 {vr(V_SV,4)}, {vr(96+8*m,4)}, {vr(96+8*m+4,4)}, {'0' if m == 0 else vr(V_SV,4)}")
        g.put(gi + 3 + m, F(mm, 2))
    def kst(p):
        p(f"buffer_store_dwordx4 {vr(V_SV,4)}, {vr(V_L16)}, {sr(S_WS,4)}, {sr(S_ST)} offen sc1")
        cx.sttag = p.vmtag()
    g.put(gi + 8, F(kst, 1))
    def kpost(p):
        p.wait_vm(cx.sttag)
        spin_check(p, "L_CF", f"buffer_load_dword {vr(V_PF)}, v96, {sr(S_DBG,4)}, 0 offen sc1",
                   f"v_and_b32 v96, 12, {vr(V_PA)}\nv_cmp_ne_u32 vcc, 1, {vr(V_PF)}")
        p(post(1, sr(S_KFO)))
    g.put(min(55, gi + 8 + OPT["kf1"]), F(kpost, 6))
    g.spread(w2_stream(cx, [0, 1, 2, 3, 4], [5, 6, 7, 8, 9]), 2, cap=OPT["capB"], end=50)
    gen_pass(p, cx, "P1", g, lambda p: head_save(p, cx, save_phi, save_mul), cx.exit_after)

def pass2(p, cx):
    g = Gaps(56)
    gi = g.spread(h_items(cx), 0, cap=OPT["capA"])
    def fpost(p):
        p.wait_vm(cx.sttag)
        p(post(1, sr(S_FO)))
    g.put(gi + OPT["fl1"], F(fpost, 3))
    W = w2_stream(cx, [5, 6, 7, 8, 9], [10, 11, 12, 13])
    g.spread(W, gi + 1, cap=OPT["capB"], end=52)
    g.put(48, f"""s_add_u32 m0, {sr(S_WBLK)}, {15*1024}
    buffer_load_dwordx4 {vr(V_WB)}, {sr(S_W,4)}, {sr(S_C+6)} offen offset:1024 lds""")
    def pa(p):
        p(f"s_lshl_b32 {sr(S_PROG)}, {sr(S_RB)}, 8\ns_add_u32 {sr(S_PROG)}, {sr(S_PROG)}, {WS_FLG+FL_ROW}")
        p(f"buffer_load_dword {vr(V_PF)}, {vr(V_PA)}, {sr(S_WS,4)}, {sr(S_PROG)} offen sc1")
        cx.ptag = p.vmtag()
    g.put(53, F(pa, 3))
    pre = f"""s_mov_b64 {sr(S_NB,2)}, {sr(S_WO,2)}
    s_mov_b32 {sr(S_NREC)}, 401408
    s_movk_i32 {sr(S_NSTR)}, 896
    s_mov_b32 {sr(S_NST2)}, 14336
    s_mul_i32 {sr(S_NCOL)}, {sr(S_WV)}, {104*896}
    s_lshl_b32 {sr(S_T0)}, {sr(S_CS)}, 7
    s_add_u32 {sr(S_NCOL)}, {sr(S_NCOL)}, {sr(S_T0)}
    """ + "\n".join(f"s_mov_b32 {sr(S_M+c)}, {c}" for c in range(7)) + "\n" + st_addr_h(sr(S_J))
    gen_pass(p, cx, "P2", g, lambda p: head_save(p, cx, save_max, save_max, pre), cx.exit_after, last=True)

def pass2i(p, cx, ea, rta):
    g = Gaps(56)
    gi = g.spread(h_items(cx), 0, cap=OPT["capA"])
    def fpost(p):
        p.wait_vm(cx.sttag)
        p(post(sr(S_PROG), sr(S_FO)))
    g.put(gi + OPT["fl1"], F(fpost, 3))
    RS = sr(S_W2, 4)
    reload = f"buffer_load_dword {vr(V_PF)}, {vr(V_PK)}, {RS}, {sr(S_T1)} offen sc1"
    def rp(p):
        p(reload); cx.ptag = p.vmtag()
    g.put(OPT["rchk"] - 6, F(rp, 1))
    def rc(p):
        p.wait_vm(cx.ptag)
        p(f"s_cmp_eq_u32 {sr(S_W2+2)}, 0\ns_cbranch_scc1 L_RK_ok")
        spin_check(p, "L_RK", reload, f"v_cmp_ne_u32 vcc, 1, {vr(V_PF)}")
        p(f"""s_lshl_b32 {sr(S_T1)}, {sr(S_R)}, 16
        s_lshl_b32 {sr(S_T0)}, {sr(S_WV)}, 10
        s_add_u32 {sr(S_T1)}, {sr(S_T1)}, {sr(S_T0)}
        s_add_u32 {sr(S_T1)}, {sr(S_T1)}, {WS_KVP}""")
    g.put(OPT["rchk"], F(rc, 8))
    lt = {}
    def dst(k): return 96 + 4 * k if k < 10 else V_SV + 4 * (k - 10)
    def ld(k):
        def f(p):
            p(f"buffer_load_dwordx4 {vr(dst(k),4)}, {vr(V_L16)}, {RS}, {sr(S_T1)} offen")
            lt[k] = p.vmtag()
            p(f"s_add_u32 {sr(S_T1)}, {sr(S_T1)}, 4096")
        return F(f, 2)
    g2_ = g.spread([ld(k) for k in range(10)], OPT["rchk"] + 1, cap=OPT["capB"] + 1)
    g3 = g.spread([ld(k) for k in range(10, 16)], max(g2_, gi + 1), cap=OPT["capB"] + 1)
    M = f"""s_and_b32 {sr(S_T0)}, {sr(S_R)}, 1
    s_cmp_eq_u32 {sr(S_T0)}, 0\ns_cselect_b32 {sr(S_MEV)}, 0x1fffffff, 0xfffffff1
    s_lshr_b32 {sr(S_T2)}, {sr(S_WV)}, 1\ns_lshl_b32 {sr(S_T2)}, {sr(S_T2)}, 4\ns_lshr_b32 {sr(S_MEV)}, {sr(S_MEV)}, {sr(S_T2)}
    s_and_b32 {sr(S_MEV)}, {sr(S_MEV)}, 0xffff\ns_mul_i32 {sr(S_MEV)}, {sr(S_MEV)}, 0x10001\ns_mov_b32 {sr(S_MEV+1)}, {sr(S_MEV)}
    s_lshl_b32 {sr(S_T0)}, {sr(S_T0)}, 1\ns_and_b32 {sr(S_T2)}, {sr(S_WV)}, 1\ns_or_b32 {sr(S_T0)}, {sr(S_T0)}, {sr(S_T2)}
    s_cmp_eq_u32 {sr(S_T0)}, 2\ns_cselect_b32 {sr(S_T2)}, 0xffff0000, -1\ns_and_b32 {sr(S_MEV)}, {sr(S_MEV)}, {sr(S_T2)}
    s_cmp_eq_u32 {sr(S_T0)}, 1\ns_cselect_b32 {sr(S_T2)}, 0xffff, -1\ns_and_b32 {sr(S_MEV+1)}, {sr(S_MEV+1)}, {sr(S_T2)}
    v_and_b32 v136, 15, {vr(V_L)}\nv_lshrrev_b32 v137, 5, {vr(V_L)}\nv_lshl_add_u32 v136, v137, 5, v136
    v_lshlrev_b32 v136, 4, v136\nv_bfe_u32 v137, {vr(V_L)}, 4, 1\nv_lshl_add_u32 v136, v137, 3, v136
    s_lshl_b32 {sr(S_T1)}, {sr(S_R)}, 11\ns_and_b32 {sr(S_T0)}, {sr(S_WV)}, 1\ns_lshl_b32 {sr(S_T0)}, {sr(S_T0)}, 10\ns_add_u32 {sr(S_T1)}, {sr(S_T1)}, {sr(S_T0)}
    s_lshr_b32 {sr(S_T0)}, {sr(S_WV)}, 1\ns_lshl_b32 {sr(S_T0)}, {sr(S_T0)}, 8\ns_add_u32 {sr(S_T1)}, {sr(S_T1)}, {sr(S_T0)}\ns_add_u32 {sr(S_T1)}, {sr(S_T1)}, {WS_KVF}""".split("\n    ")
    g4 = g.spread(M, g3 + 1, cap=4)
    A = []
    for k in range(1, 16):
        def ad(p, k=k):
            p.wait_vm(lt[k])
            for i in range(4): p(f"v_add_f32 {vr(96+i)}, {vr(96+i)}, {vr(dst(k)+i)}")
        A.append(F(ad, 5))
    A.append("\n".join(f"v_cndmask_b32 {vr(96+i)}, 0, {vr(96+i)}, {sr(S_MEV,2)}" for i in range(4)))
    A.append("v_cvt_pk_bf16_f32 v100, v96, v97\nv_cvt_pk_bf16_f32 v101, v98, v99")
    def ks(p):
        p(f"buffer_store_dwordx2 v[100:101], v136, {RS}, {sr(S_T1)} offen sc1")
        cx.ktag = p.vmtag()
    A.append(F(ks, 1))
    g5 = g.spread(A, max(g4, OPT.get("radd", 34)), cap=5)
    assert g5 < 55
    pre = f"""s_add_u32 {sr(S_T2)}, {sr(S_CUR)}, 2
    """ + next_h(sr(S_T2)) + "\n" + st_addr_h(sr(S_PRV)) + f"""
    s_lshl_b32 {sr(S_T0)}, {sr(S_PROG)}, 4
    s_or_b32 {sr(S_T0)}, {sr(S_T0)}, {sr(S_J)}
    s_cmp_eq_u32 {sr(S_T0)}, 23
    s_cselect_b32 {sr(S_W2+2)}, {WS_SIZE}, 0
    s_mov_b64 {sr(S_W2,2)}, {sr(S_WS,2)}
    s_lshl_b32 {sr(S_T1)}, {sr(S_R)}, 2
    s_add_u32 {sr(S_T1)}, {sr(S_T1)}, {sr(S_WV)}
    s_lshl_b32 {sr(S_T1)}, {sr(S_T1)}, 7
    s_add_u32 {sr(S_T1)}, {sr(S_T1)}, {WS_FLG+FL_KF1}
    v_and_b32 {vr(V_PK)}, 63, {vr(V_PA)}"""
    cx.rt = {k: p.lg - rta[k] for k in range(3)}
    gen_pass(p, cx, "P2I", g, lambda p: head_save(p, cx, save_max, save_max, pre), ea)
    p.wait_vm(cx.ktag)
    p(f"""
    s_lshr_b32 {sr(S_T0)}, {sr(S_R)}, 2
    s_lshl_b32 {sr(S_T0)}, {sr(S_T0)}, 7
    s_and_b32 {sr(S_T1)}, {sr(S_R)}, 3
    s_lshl_b32 {sr(S_T1)}, {sr(S_T1)}, 2
    s_add_u32 {sr(S_T1)}, {sr(S_T1)}, {sr(S_WV)}
    s_lshl_b32 {sr(S_T1)}, {sr(S_T1)}, 2
    s_add_u32 {sr(S_T0)}, {sr(S_T0)}, {sr(S_T1)}
    s_add_u32 {sr(S_T0)}, {sr(S_T0)}, {WS_FLG+FL_KF2}
    v_mov_b32 {vr(V_FT)}, 1
    buffer_store_dword {vr(V_FT)}, off, {RS}, {sr(S_T0)} sc1
    s_mov_b32 {sr(S_PRV)}, {sr(S_CUR)}
    s_add_u32 {sr(S_CUR)}, {sr(S_CUR)}, 2
    s_add_u32 {sr(S_PROG)}, {sr(S_PROG)}, 1
    """)
    cx.exit_after = {u: n + 1 for u, n in cx.exit_after.items()}

def emit_items(p, its):
    for it in its:
        if isinstance(it, str): p(it)
        else: it(p)

def idle_path(p, cx, ea1, rta1):
    import copy
    q = Prog(); c2 = Ctx(); c2.pre_bar = {}; c2.w2t = {}
    q.vm = q.lg = 1000
    pass2i(q, c2, ea1, rta1)
    ea = {u: min(ea1[u], c2.exit_after[u]) for u in ea1}
    rta = {k: min(rta1[k], c2.rt_after[k]) for k in rta1}
    p(f"L_IDLE:\ns_mov_b32 {sr(S_PROG)}, 1\ns_mov_b32 {sr(S_PRV)}, {sr(S_J)}\nL_ILOOP:")
    stamp(p)
    pass2i(p, cx, ea, rta)
    p(f"s_cmp_lt_u32 {sr(S_CUR)}, 28\ns_cbranch_scc1 L_ILOOP")
    stamp(p)
    p(st_addr_h(sr(S_PRV)))
    p("s_nop 7")
    for i in range(32): p(save_max(i))
    emit_items(p, h_items(cx))
    p("s_waitcnt vmcnt(0)")
    p(post(sr(S_PROG), sr(S_FO)))
    stamp_out(p)
    p("s_endpgm")

def phase2(p, cx):
    ACC, OT, OB, TM = 32, 208, 240, 24
    PQ, KV, WOF, ACS = 0, 64, 96, 128
    XD, B2 = 100, 96
    S_XO, S_PK, S_MLO, S_MHI = S_CUR, S_NXT, S_MEV, S_MOD
    rowpoll = f"buffer_load_dword {vr(V_PF)}, {vr(V_PA)}, {sr(S_WS,4)}, {sr(S_PROG)} offen sc1"
    def buf(u):
        if u < 14: return "v", 144 + 8 * u
        if u < 19: return "v", 96 + 8 * (u - 14)
        if u < 23: return "a", 224 + 8 * (u - 19)
        return "v", 144 + 8 * (u - 23)
    def rr(k, a, n): return vr(a, n) if k == "v" else ar(a, n)
    ut = {}
    def load(u):
        k, a = buf(u)
        pr = u >> 1
        if pr < 12: so = sr(S_TAB + pr)
        else:
            so = sr(S_T0); p(f"s_mov_b32 {so}, {pr*8192}")
        for rt in range(2):
            p(f"buffer_load_dwordx4 {rr(k,a+4*rt,4)}, {vr(V_H+2*(u&1)+rt)}, {sr(S_WS,4)}, {so} offen")
        ut[u] = p.vmtag()
    def unit(u, mid=None):
        k, a = buf(u)
        p.wait_vm(ut[u])
        for ct in range(2):
            for rt in range(2):
                d = ACC + 32 * ct + 16 * rt
                p(f"v_mfma_f32_32x32x16_bf16 {vr(d,16)}, {ar(8*u+4*ct,4)}, {rr(k,a+4*rt,4)}, {'0' if u == 0 else vr(d,16)}")
                if mid and ct == 0 and rt == 0: mid()
    stamp(p)
    p.wait_vm(cx.ptag)
    spin_check(p, "L_PA", rowpoll, f"v_cmp_gt_u32 vcc, 1, {vr(V_PF)}")
    p("s_barrier")
    stamp(p)
    for u in range(OPT["n0"]): load(u)
    vm0, lg0 = p.vm, p.lg
    p(f"s_cmp_lt_u32 {sr(S_J)}, 7\ns_cbranch_scc1 L_EQ")
    p(st_addr_h(sr(S_CUR)))
    for i in range(32): p(save_max(i))
    emit_items(p, h_items(cx))
    p("s_branch L_EJ\nL_EQ:")
    p.vm = vm0
    p(f"""
    s_lshl_b32 {sr(S_ST)}, {sr(S_R)}, 2
    s_add_u32 {sr(S_ST)}, {sr(S_ST)}, {sr(S_WV)}
    s_mul_i32 {sr(S_ST)}, {sr(S_ST)}, {56*512}
    s_lshl_b32 {sr(S_T0)}, {sr(S_CUR)}, 12
    s_add_u32 {sr(S_ST)}, {sr(S_ST)}, {sr(S_T0)}
    s_add_u32 {sr(S_ST)}, {sr(S_ST)}, {WS_PQ}
    """)
    for i in range(32): p(save_phi(i))
    emit_items(p, q_items(cx, 96))
    p("L_EJ:")
    stamp(p)
    for u in range(OPT["n0"], 16): load(u)
    for pr in range(10, 14): emit_items(p, w2_read_items(cx, pr, pr % 5))
    p(f"""
    s_lshl_b32 {sr(S_XO)}, {sr(S_RB)}, 2
    s_add_u32 {sr(S_XO)}, {sr(S_XO)}, {sr(S_WV)}
    s_mul_i32 {sr(S_XO)}, {sr(S_XO)}, {16*896}
    s_lshl_b32 {sr(S_T1)}, {sr(S_CS)}, 7
    s_add_u32 {sr(S_XO)}, {sr(S_XO)}, {sr(S_T1)}
    s_lshl_b32 {sr(S_PK)}, {sr(S_WV)}, 7
    s_add_u32 {sr(S_PK)}, {sr(S_PK)}, {WS_FLG+FL_KF2}
    s_mov_b32 {sr(S_MLO)}, -1
    s_mov_b32 {sr(S_MLO+1)}, 0
    s_mov_b32 {sr(S_MHI)}, 0
    s_mov_b32 {sr(S_MHI+1)}, -1
    v_and_b32 v22, 63, {vr(V_PA)}
    v_mov_b32 v23, 0
    v_cmp_eq_u32 vcc, 28, v22
    v_cndmask_b32 v23, v23, 3, vcc
    v_cmp_eq_u32 vcc, 60, v22
    v_cndmask_b32 v23, v23, 4, vcc
    v_and_b32 v21, 7, {vr(V_L)}
    v_lshlrev_b32 v21, 4, v21
    """)
    p.wait_vm(cx.sttag)
    p(post(2, sr(S_FO)))
    stamp(p)
    kvpoll = f"buffer_load_dword {vr(V_PK)}, v22, {sr(S_WS,4)}, {sr(S_PK)} offen sc1"
    P0 = (0, 3, 7, 10)
    htag = {}
    def issue_b():
        p(rowpoll); p(kvpoll); cx.ptag = p.vmtag()
    def check_b():
        p.wait_vm(cx.ptag)
        spin_check(p, "L_PB", rowpoll, f"v_cmp_gt_u32 vcc, 2, {vr(V_PF)}")
        for u in range(16, 25): load(u)
        spin_check(p, "L_PK", kvpoll, f"v_cmp_ne_u32 vcc, 1, {vr(V_PK)}")
        p(f"""
        s_lshl_b32 {sr(S_T0)}, {sr(S_WV)}, 13
        s_add_u32 {sr(S_T0)}, {sr(S_T0)}, {WS_KVF}
        s_mul_i32 {sr(S_T1)}, {sr(S_RB)}, {2*56*512}
        s_mul_i32 {sr(S_T2)}, {sr(S_WV)}, {14*512}
        s_add_u32 {sr(S_T1)}, {sr(S_T1)}, {sr(S_T2)}
        s_add_u32 {sr(S_T1)}, {sr(S_T1)}, {WS_PQ}
        """)
        for hh in range(4):
            for ks in range(2):
                o = (2 * hh + ks) * 1024
                if o == 4096: p(f"s_add_u32 {sr(S_T0)}, {sr(S_T0)}, 4096")
                p(f"buffer_load_dwordx4 {ar(KV+8*hh+4*ks,4)}, {vr(V_L16)}, {sr(S_WS,4)}, {sr(S_T0)} offen offset:{o%4096}")
            for rt in range(2):
                p(f"s_add_u32 {sr(S_T2)}, {sr(S_T1)}, {rt*56*512 + P0[hh]*512}")
                for ks in range(2):
                    p(f"buffer_load_dwordx4 {ar(PQ+16*hh+8*rt+4*ks,4)}, {vr(V_L16)}, {sr(S_WS,4)}, {sr(S_T2)} offen offset:{ks*1024}")
            htag[hh] = p.vmtag()
    p("s_waitcnt lgkmcnt(0)")
    def issue_l():
        p(rowpoll); cx.ptag = p.vmtag()
    for u in range(25):
        unit(u, issue_b if u == OPT["pbi"] else (issue_l if u == 24 else None))
        if u == OPT["pbc"]:
            stamp(p)
            check_b()
            stamp(p)
    stamp(p)
    def check_l():
        p.wait_vm(cx.ptag)
        spin_check(p, "L_PL", rowpoll, f"v_cmp_gt_u32 vcc, v23, {vr(V_PF)}")
        for u in range(25, 28): load(u)
        p(f"buffer_load_dwordx4 {vr(XD,4)}, {vr(V_XO)}, {sr(S_X,4)}, {sr(S_XO)} offen")
        p(f"s_add_u32 {sr(S_ST)}, {sr(S_XO)}, 7168")
        p(f"s_lshl_b32 {sr(S_T1)}, {sr(S_CS)}, 7")
        p(f"buffer_load_dwordx4 {vr(XD+4,4)}, {vr(V_XO)}, {sr(S_X,4)}, {sr(S_ST)} offen")
        p(f"buffer_load_dwordx4 {vr(B2,4)}, v21, {sr(S_B2,4)}, {sr(S_T1)} offen")
        cx.xtag = p.vmtag()
    for hh in range(4):
        wf = WOF + 16 * (hh & 1)
        for q in range(2):
            for ct in range(2):
                for t in range(2):
                    p(f"ds_read_b64_tr_b16 {ar(wf+8*q+4*ct+2*t,2)}, {vr(V_A0+ct)} offset:{wpos(P0[hh]+2*q+t)*1024}")
        p.wait_vm(htag[hh])
        for ks in range(2):
            for rt in range(2):
                c = "0" if ks == 0 else vr(OT + 16 * rt, 16)
                p(f"v_mfma_f32_32x32x16_bf16 {vr(OT+16*rt,16)}, {ar(KV+8*hh+4*ks,4)}, {ar(PQ+16*hh+8*rt+4*ks,4)}, {c}")
        if hh == OPT.get("plc", 2):
            stamp(p)
            check_l()
            stamp(p)
        zi = 0 if hh & 1 else 12
        for rt in range(2):
            o = OT + 16 * rt
            p(f"v_mov_b32 {vr(TM)}, {vr(o+zi)}")
            p(f"v_mov_b32 {vr(TM+1)}, {vr(o+zi)}")
            p(f"v_permlane32_swap_b32 {vr(TM)}, {vr(TM+1)}")
            d = TM if hh & 1 else TM + 1
            p(f"v_add_f32 {vr(TM+2)}, 0x358637bd, {vr(d)}")
            p(f"v_rcp_f32 {vr(TM+2)}, {vr(TM+2)}")
            p(f"v_cndmask_b32 {vr(o+zi)}, {vr(o+zi)}, 0, {sr(S_MLO if hh & 1 else S_MHI,2)}")
            for i in range(8):
                p(f"v_pk_mul_f32 {vr(o+2*i,2)}, {vr(o+2*i,2)}, {vr(TM+2,2)} op_sel_hi:[1,0]")
            for i in range(8):
                p(f"v_cvt_pk_bf16_f32 {vr(OB+8*rt+i)}, {vr(o+2*i)}, {vr(o+2*i+1)}")
        p("s_waitcnt lgkmcnt(0)")
        for q in range(2):
            for ct in range(2):
                for rt in range(2):
                    a = ACS + 32 * ct + 16 * rt
                    c = "0" if (hh == 0 and q == 0) else ar(a, 16)
                    p(f"v_mfma_f32_32x32x16_bf16 {ar(a,16)}, {ar(wf+8*q+4*ct,4)}, {vr(OB+8*rt+4*q,4)}, {c}")
    stamp(p)
    def dump(f, acc, base):
        for ct in range(2):
            for a in range(4):
                p(f"v_xor_b32 {vr(TM+(a&1))}, {(8*ct+2*a)*16}, {vr(V_RW)}")
                for rt in range(2):
                    p(f"ds_write_b128 {vr(TM+(a&1))}, {f(acc+32*ct+16*rt+4*a,4)} offset:{base+rt*8192}")
    unit(25)
    dump(ar, ACS, 0)
    unit(26); unit(27)
    stamp(p)
    dump(vr, ACC, 16384)
    p("s_waitcnt lgkmcnt(0)")
    p("s_barrier")
    stamp(p)
    R, B, X, E = 128, 32, 40, 48
    p(f"v_mov_b32 {vr(TM+3)}, {vr(V_RR)}")
    p(f"v_mov_b32 v20, {vr(V_XO)}")
    p(f"v_xor_b32 {vr(TM)}, 16, {vr(V_RR)}")
    p(f"v_add_u32 {vr(TM+1)}, {2*WREG}, {vr(V_RR)}")
    p(f"v_add_u32 {vr(TM+2)}, {2*WREG}, {vr(TM)}")
    tg = {}
    for ps in range(2):
        for arr in range(2):
            for sw in range(4):
                for c in range(2):
                    a = (TM + 3, TM, TM + 1, TM + 2)[c + 2 * (sw >> 1)]
                    p(f"ds_read_b128 {vr(R+64*ps+32*arr+8*sw+4*c,4)}, {vr(a)} offset:{(sw&1)*WREG + arr*16384 + ps*2048}")
            tg[ps, arr] = p.lgtag()
    p.wait_vm(cx.xtag)
    for i in range(4):
        p(f"v_lshlrev_b32 {vr(B+2*i)}, 16, {vr(B2+i)}")
        p(f"v_and_b32 {vr(B+2*i+1)}, 0xffff0000, {vr(B2+i)}")
    p(f"s_mov_b32 {sr(S_T1)}, {hex(LOG2E | 0x80000000)}")
    p(f"s_mov_b32 {sr(S_MEV)}, 1.0")
    p(f"s_mov_b32 {sr(S_MEV+1)}, 1.0")
    for ps in range(2):
        for arr in range(2):
            p.wait_lg(tg[ps, arr])
            b = R + 64 * ps + 32 * arr
            for i in range(4):
                p(f"v_pk_add_f32 {vr(b+2*i,2)}, {vr(b+2*i,2)}, {vr(b+8+2*i,2)}")
                p(f"v_pk_add_f32 {vr(b+16+2*i,2)}, {vr(b+16+2*i,2)}, {vr(b+24+2*i,2)}")
            for i in range(4):
                p(f"v_pk_add_f32 {vr(b+2*i,2)}, {vr(b+2*i,2)}, {vr(b+16+2*i,2)}")
        s_ = R + 64 * ps; o_ = s_ + 32
        for i in range(4):
            p(f"v_pk_add_f32 {vr(o_+2*i,2)}, {vr(o_+2*i,2)}, {vr(B+2*i,2)}")
        for i in range(8):
            p(f"v_mul_f32 {vr(E+i)}, {sr(S_T1)}, {vr(o_+i)}")
        for i in range(8):
            p(f"v_exp_f32 {vr(E+i)}, {vr(E+i)}")
        for i in range(4):
            p(f"v_lshlrev_b32 {vr(X+2*i)}, 16, {vr(XD+4*ps+i)}")
            p(f"v_and_b32 {vr(X+2*i+1)}, 0xffff0000, {vr(XD+4*ps+i)}")
        for i in range(4):
            p(f"v_pk_add_f32 {vr(E+2*i,2)}, {vr(E+2*i,2)}, {sr(S_MEV,2)}")
        for i in range(8):
            p(f"v_rcp_f32 {vr(E+i)}, {vr(E+i)}")
        for i in range(4):
            p(f"v_pk_mul_f32 {vr(o_+2*i,2)}, {vr(o_+2*i,2)}, {vr(s_+2*i,2)}")
        for i in range(4):
            p(f"v_pk_fma_f32 {vr(X+2*i,2)}, {vr(o_+2*i,2)}, {vr(E+2*i,2)}, {vr(X+2*i,2)}")
        for i in range(4):
            p(f"v_cvt_pk_bf16_f32 {vr(s_+i)}, {vr(X+2*i)}, {vr(X+2*i+1)}")
        so = sr(S_XO) if ps == 0 else sr(S_ST)
        p(f"buffer_store_dwordx4 {vr(s_,4)}, v20, {sr(S_OUT,4)}, {so} offen")
    stamp_out(p)

def gen_all(p):
    cx = Ctx(); cx.pre_bar = {}; cx.w2t = {}
    ea = prologue(p, cx)
    pass0(p, cx, ea)
    stamp(p)
    pass1(p, cx)
    ea1, rta1 = dict(cx.exit_after), dict(cx.rt_after)
    p(f"s_cmp_eq_u32 {sr(S_CS)}, 7\ns_cbranch_scc1 L_IDLE")
    stamp(p)
    pass2(p, cx)
    phase2(p, cx)
    p("L_END:\ns_endpgm")
    idle_path(p, cx, ea1, rta1)

if __name__ == "__main__":
    out = sys.argv[1]
    for a in sys.argv[2:]:
        k, v = a.split("=")
        OPT[k] = v if not v.lstrip("-").isdigit() else int(v)
    build([(NAME + "_kernel", gen_all, 256, 256, 163840, 512, 256)], out)
```

```python
import sys
sys.path.insert(0, "gen")
from asmlib import *
import gen as G1
from gen import vr, ar, sr, NAME, build, LOG2E

WS_H, WS_PQ, WS_KVP, WS_KVF, WS_FLG, WS_SIZE = 0, 0x700000, 0x8C0000, 0x9C0000, 0x9D0000, 0xA00000
WS_RS = 0x9E0000
FL_ROW, FL_KF1, FL_KF2 = 0, 64 * 128, 128 * 128
WREG = 40960
OPT = dict(dbg=False, mapping="C", dstyle="dot", spin=200000)

S_X, S_W, S_WS, S_B, S_W2, S_OUT, S_B2, S_DBG = 4, 8, 12, 16, 20, 24, 28, 32
S_WQKV, S_W1, S_WO = 36, 38, 40
S_NB, S_NREC, S_NCOL, S_NSTR, S_NBREC, S_NBOFF, S_NST2 = 42, 44, 45, 46, 47, 48, 49
S_C, S_M = 50, 57
S_WV, S_WBLK, S_R, S_J, S_RB, S_CS = 64, 65, 66, 67, 68, 69
S_ST, S_T0, S_T1, S_T2, S_EPS, S_LN2 = 74, 75, 76, 77, 78, 79
S_MEV, S_MOD = 80, 82
S_PROG, S_NXT, S_CUR, S_SPIN = 84, 85, 86, 87
S_TAB = 88
S_K1, S_K2 = 100, 101
S_ROWM = 3
V_L, V_AW = 1, 2
V_RS, V_RSL, V_L16, V_KFO = 6, 7, 8, 9
V_WA, V_WB = 10, 11
V_B0, V_B1, V_XA = 12, 14, 16
V_ROW, V_TP, V_BO = 20, 21, 22
V_W2 = 23
V_A0 = 27
V_FO, V_FT, V_STAMP = 29, 30, 31
V_ACC, V_SV, V_TMP, V_X = 32, 64, 96, 144
A_RING = 224
SCR = 16 * 1024

def pos(u):
    return u if u % 2 == 0 else (u + 2 if u < 13 else 1)

def stamp(p, real=False):
    if not OPT["dbg"]: return
    p("s_memrealtime s[70:71]" if real else "s_memtime s[70:71]")
    p.lg += 0
    p("s_waitcnt lgkmcnt(0)")
    p("s_mov_b64 exec, s[72:73]")
    p(f"v_mov_b32 v{V_STAMP}, s70")
    p("s_mov_b64 exec, -1")
    p("s_lshl_b64 s[72:73], s[72:73], 1")
def stamp_init(p):
    if not OPT["dbg"]: return
    p("s_mov_b64 s[72:73], 1")
    p(f"v_mov_b32 v{V_STAMP}, 0")
    stamp(p, True); stamp(p)
def stamp_out(p):
    if not OPT["dbg"]: return
    stamp(p); stamp(p, True)
    p(f"""
    s_lshl_b32 s70, s2, 2
    s_add_u32 s70, s70, {sr(S_WV)}
    s_lshl_b32 s70, s70, 8
    s_add_u32 s70, s70, 0xA00000
    v_lshlrev_b32 v0, 2, {vr(V_L)}
    s_mov_b32 {sr(S_WS+2)}, 0x1000000
    buffer_store_dword v{V_STAMP}, v0, {sr(S_WS,4)}, s70 offen
    """)

class Gaps:
    def __init__(self, n, cap=4):
        self.g = [[] for _ in range(n)]
        self.cost = [0] * n
        self.cap = cap
    def put(self, gi, item, cost=None):
        c = cost if cost is not None else (item.count("\n") + 1 if isinstance(item, str) else 1)
        self.g[gi].append(item); self.cost[gi] += c
    def spread(self, items, start, cap=None, end=None):
        cap = cap or self.cap
        gi = start
        for it in items:
            c = it.count("\n") + 1 if isinstance(it, str) else getattr(it, "cost", 1)
            while self.cost[gi] + c > cap and self.cost[gi] > 0 and gi + 1 < (end or len(self.g)):
                gi += 1
            self.put(gi, it, c)
        return gi
    def emit(self, p, gi):
        for it in self.g[gi]:
            if isinstance(it, str): p(it)
            else: it(p)

def F(fn, cost=1):
    fn.cost = cost
    return fn

def ring_reads(p, e, half):
    st = A_RING + 8 * (e % 4)
    ee = e % 28
    off = pos(ee >> 1) * 1024
    a = V_AW + half + 2 * (ee & 1)
    p(f"ds_read_b64_tr_b16 {ar(st+4*half,2)}, {vr(a)} offset:{off}")
    p(f"ds_read_b64_tr_b16 {ar(st+4*half+2,2)}, {vr(a)} offset:{off+512}")

class Ctx:
    pass

def spin_check(p, lab, reload, cmp_lines):
    p(f"s_mov_b32 {sr(S_SPIN)}, {OPT['spin']}")
    p(f"{lab}_c:")
    p(cmp_lines)
    p(f"s_cbranch_vccz {lab}_ok")
    vm0 = p.vm
    p(f"s_sub_u32 {sr(S_SPIN)}, {sr(S_SPIN)}, 1")
    p(f"s_cbranch_scc1 {lab}_ok")
    p(reload)
    p("s_waitcnt vmcnt(0)")
    p(f"s_branch {lab}_c")
    p.vm = vm0
    p(f"{lab}_ok:")

def switch_items():
    now = f"""s_mov_b64 {sr(S_W,2)}, {sr(S_NB,2)}
    s_mov_b32 {sr(S_W+2)}, {sr(S_NREC)}
    s_mul_i32 {sr(S_C)}, {sr(S_M)}, {sr(S_NST2)}
    v_mad_u32_u24 {vr(V_WA)}, {vr(V_ROW)}, {sr(S_NSTR)}, {vr(V_TP)}
    v_add_u32 {vr(V_WA)}, {sr(S_NCOL)}, {vr(V_WA)}"""
    later = [f"""s_lshr_b32 {sr(S_T2)}, {sr(S_NST2)}, 1
    s_sub_u32 {sr(S_T2)}, {sr(S_T2)}, 1024
    v_add_u32 {vr(V_WB)}, {sr(S_T2)}, {vr(V_WA)}"""]
    for c in range(1, 7):
        later.append(f"s_mul_i32 {sr(S_C+c)}, {sr(S_M+c)}, {sr(S_NST2)}")
    return now, later

def gen_pass(p, cx, name, gaps, head, entry_after, last=False):
    vm_entry = p.vm
    cx.ea = lambda u: min(63, entry_after[u] + (p.vm - vm_entry))
    head(p)
    nxt = {}
    def wait_piece(u, cur=True):
        if cur and u not in cx.wt_in:
            n = entry_after[u] + (p.vm - vm_entry)
            p(f"s_waitcnt vmcnt({min(n,63)})")
        else:
            p.wait_vm(cx.wt_in[u] if cur else nxt[u])
    cx.wt_in = {}
    rt = cx.rt
    now, later = switch_items()
    for e in range(28):
        st = A_RING + 8 * (e % 4)
        p.wait_lg(rt[e])
        p(f"v_mfma_f32_32x32x16_bf16 {vr(V_ACC,16)}, {ar(st,4)}, {vr(V_X+4*e,4)}, {vr(V_ACC,16)}")
        if e % 4 == 1:
            v = (e + 3) // 4
            if v < 7: wait_piece(2 * v + 1)
            elif not last: wait_piece(1, cur=False)
            if cx.pre_bar.get((name, v)): cx.pre_bar[(name, v)](p)
            p("s_barrier")
        if not (last and e + 3 >= 28): ring_reads(p, e + 3, 0)
        gaps.emit(p, 2 * e)
        p(f"v_mfma_f32_32x32x16_bf16 {vr(V_ACC+16,16)}, {ar(st+4,4)}, {vr(V_X+4*e,4)}, {vr(V_ACC+16,16)}")
        if not (last and e + 3 >= 28): ring_reads(p, e + 3, 1)
        rt[e + 3] = p.lgtag()
        if e % 4 == 1:
            v = (e + 3) // 4
            uo = (2 * v - 3) % 14
            p(f"s_add_u32 m0, {sr(S_WBLK)}, {pos(2*v-2)*1024}")
            p(f"buffer_load_dwordx4 {vr(V_WB)}, {sr(S_W,4)}, {sr(S_C+(uo>>1))} offen offset:1024 lds")
            if v == 1: cx.wt_in[13] = p.vmtag()
            else: nxt[uo] = p.vmtag()
            if v == 1: p(now)
        if e % 4 == 2:
            v = (e + 2) // 4
            p(f"s_add_u32 m0, {sr(S_WBLK)}, {pos(2*v-2)*1024}")
            p(f"buffer_load_dwordx4 {vr(V_WA)}, {sr(S_W,4)}, {sr(S_C+v-1)} offen lds")
            nxt[2 * v - 2] = p.vmtag()
            if v == 1:
                p(later[0]); p(later[1])
            elif v < 7:
                p(later[v])
        if e == 3 and not last:
            p(f"s_mov_b32 {sr(S_B+2)}, {sr(S_NBREC)}")
            p(f"buffer_load_ushort {vr(V_B0)}, {vr(V_BO)}, {sr(S_B,4)}, {sr(S_NBOFF)} offen")
            p(f"buffer_load_ushort {vr(V_B1)}, {vr(V_BO)}, {sr(S_B,4)}, {sr(S_NBOFF)} offen offset:64")
            cx.btag = p.vmtag()
        gaps.emit(p, 2 * e + 1)
    cx.rt = {0: rt[28], 1: rt[29], 2: rt[30]}
    cx.rt_after = {k: p.lg - rt[28 + k] for k in range(3)}
    cx.exit_after = {u: p.vm - t for u, t in nxt.items()}
    cx.exit_after["b"] = p.vm - cx.btag
    cx.nxt = nxt

def m0_guard(items):
    return items

def w2_dma_items(cx, pr, slot):
    so = sr(S_T1)
    if pr < 12: a = f"s_mul_i32 {so}, {sr(S_TAB+pr)}, 14"
    else: a = f"s_mov_b32 {so}, {pr*114688}"
    its = []
    for k in range(4):
        def f(p, k=k):
            if k == 0: p(a)
            p(f"s_add_u32 m0, {sr(S_WBLK)}, {(20+4*slot)*1024}")
            p(f"buffer_load_dwordx4 {vr(V_W2+k)}, {sr(S_W2,4)}, {so} offen offset:{k*1024} lds")
            cx.w2t[pr] = p.vmtag()
        its.append(F(f, 3 if k == 0 else 2))
    return its
def w2_dma_block(p, cx, pr, slot):
    so = sr(S_T1)
    if pr < 12: p(f"s_mul_i32 {so}, {sr(S_TAB+pr)}, 14")
    else: p(f"s_mov_b32 {so}, {pr*114688}")
    p(f"s_add_u32 m0, {sr(S_WBLK)}, {(20+4*slot)*1024}")
    for k in range(4):
        p(f"buffer_load_dwordx4 {vr(V_W2+k)}, {sr(S_W2,4)}, {so} offen offset:{k*1024} lds")
    cx.w2t[pr] = p.vmtag()
def w2_read_items(cx, pr, slot, after=None):
    its = []
    def w(p):
        if after is not None: p(f"s_waitcnt vmcnt({min(63, after(p))})")
        else: p.wait_vm(cx.w2t[pr])
    its.append(F(w, 1))
    for un in range(2):
        for ct in range(2):
            u = 2 * pr + un
            its.append("\n".join(f"ds_read_b64_tr_b16 {ar(8*u+4*ct+2*t,2)}, {vr(V_A0+ct)} offset:{(20+4*slot+2*un+t)*1024}" for t in range(2)))
    return its

def d_items(s):
    its = []
    for q in range(4):
        b = V_X + 16 * s + 4 * q
        t = 108 + 8 * (q & 1)
        if OPT["dstyle"] == "dot":
            for k in range(4):
                its.append(f"v_dot2_f32_bf16 {vr(t+2*k)}, {vr(b+k)}, {sr(S_K1)}, v104\nv_dot2_f32_bf16 {vr(t+2*k+1)}, {vr(b+k)}, {sr(S_K2)}, v104")
        else:
            for k in range(4):
                its.append(f"v_lshlrev_b32 {vr(t+2*k)}, 16, {vr(b+k)}\nv_and_b32 {vr(t+2*k+1)}, {sr(S_K2)}, {vr(b+k)}")
            for k in range(4):
                its.append(f"v_add_f32 {vr(t+2*k)}, v104, {vr(t+2*k)}\nv_add_f32 {vr(t+2*k+1)}, v104, {vr(t+2*k+1)}")
        for k in range(0, 4, 2):
            its.append(f"v_cvt_pk_bf16_f32 {vr(b+k)}, {vr(t+2*k)}, {vr(t+2*k+1)}\nv_cvt_pk_bf16_f32 {vr(b+k+1)}, {vr(t+2*k+2)}, {vr(t+2*k+3)}")
    return its

def save_phi(i): return f"v_fma_f32 {vr(V_SV+i)}, {vr(V_ACC+i)}, {vr(V_RSL)}, {sr(S_EPS)}"
def save_mul(i): return f"v_mul_f32 {vr(V_SV+i)}, {vr(V_RS)}, {vr(V_ACC+i)}"
def save_max(i): return f"v_mul_f32_e64 {vr(V_SV+i)}, {vr(V_ACC+i)}, |{vr(V_ACC+i)}|"

def phi_items(lo, hi, T):
    its = []
    for i in range(lo, hi, 2):
        t = T + 2 * ((i >> 1) & 1)
        its.append(f"v_exp_f32 {vr(t)}, {vr(V_SV+i)} clamp\nv_exp_f32 {vr(t+1)}, {vr(V_SV+i+1)} clamp")
        its.append(f"v_max_f32 {vr(V_SV+i)}, {sr(S_EPS)}, {vr(V_SV+i)}\nv_max_f32 {vr(V_SV+i+1)}, {sr(S_EPS)}, {vr(V_SV+i+1)}")
        its.append(f"v_fma_f32 {vr(t)}, {vr(V_SV+i)}, {sr(S_LN2)}, {vr(t)}\nv_fma_f32 {vr(t+1)}, {vr(V_SV+i+1)}, {sr(S_LN2)}, {vr(t+1)}")
        its.append(f"v_cvt_pk_bf16_f32 {vr(V_SV+i//2)}, {vr(t)}, {vr(t+1)}")
    return its

def h_items(cx, store=True):
    its = []
    for q in range(4):
        for i in range(8 * q, 8 * q + 8, 4):
            its.append(f"v_cvt_pk_bf16_f32 {vr(V_SV+i//2)}, {vr(V_SV+i)}, {vr(V_SV+i+1)}\nv_cvt_pk_bf16_f32 {vr(V_SV+i//2+1)}, {vr(V_SV+i+2)}, {vr(V_SV+i+3)}")
            its.append(f"v_pk_max_i16 {vr(V_SV+i//2)}, {vr(V_SV+i//2)}, 0\nv_pk_max_i16 {vr(V_SV+i//2+1)}, {vr(V_SV+i//2+1)}, 0")
        its.append(st_item(cx, q))
    return its
def st_item(cx, q):
    def f(p):
        p(f"buffer_store_dwordx4 {vr(V_SV+4*q,4)}, {vr(V_L16)}, {sr(S_WS,4)}, {sr(S_ST)} offen offset:{q*1024} sc1")
        cx.sttag = p.vmtag()
    return F(f, 1)
def q_items(cx, T):
    its = []
    for q in range(4):
        its += phi_items(8 * q, 8 * q + 8, T)
        its.append(f"v_permlane32_swap_b32 {vr(V_SV+4*q)}, {vr(V_SV+4*q+2)}\nv_permlane32_swap_b32 {vr(V_SV+4*q+1)}, {vr(V_SV+4*q+3)}")
        its.append(st_item(cx, q))
    return its

def st_addr_h(g):
    return f"""s_lshl_b32 {sr(S_ST)}, {sr(S_R)}, 2
    s_add_u32 {sr(S_ST)}, {sr(S_ST)}, {sr(S_WV)}
    s_mul_i32 {sr(S_ST)}, {sr(S_ST)}, {112*1024}
    s_lshl_b32 {sr(S_T0)}, {g}, 12
    s_add_u32 {sr(S_ST)}, {sr(S_ST)}, {sr(S_T0)}"""

def next_h(g):
    return f"""s_mov_b64 {sr(S_NB,2)}, {sr(S_W1,2)}
    s_cmp_lt_u32 {g}, 28
    s_cselect_b32 {sr(S_NREC)}, 1605632, 0
    s_cselect_b32 {sr(S_NBREC)}, 3584, 0
    s_lshl_b32 {sr(S_NCOL)}, {g}, 7
    s_mov_b32 {sr(S_NBOFF)}, {sr(S_NCOL)}
    s_movk_i32 {sr(S_NSTR)}, 3584
    s_mov_b32 {sr(S_NST2)}, {64*3584}"""

def flag_post(val_s, voff):
    return f"v_mov_b32 {vr(V_FT)}, {val_s}\nbuffer_store_dword {vr(V_FT)}, {voff}, {sr(S_WS,4)}, 0 offen sc1"
```

```python
import sys
sys.path.insert(0, "gen")
from g2 import *
import g2
OPT.update(fl1=10, kf1=12, pbi=8, pbc=11, n0=6, capA=4, capB=6, rchk=16, pki=16, pkc=19, radd=36)
S_FO, S_KFO = 0, 1
V_PK, V_PF = 9, 29
V_H, V_RW, V_RR, V_XO, V_PA = 136, 140, 141, 142, 143
S_PRV = S_NXT
def post(val, soff):
    return f"v_mov_b32 {vr(V_FT)}, {val}\nbuffer_store_dword {vr(V_FT)}, off, {sr(S_WS,4)}, {soff} sc1"
def wpos(i): return 16 if i == 13 else pos(i)

def prologue(p, cx):
    p("s_cmp_ge_u32 s2, 256\ns_cbranch_scc1 L_END")
    stamp_init(p)
    for s, o in ((S_X, 0), (S_WQKV, 8), (S_WS, 80), (S_W2, 48), (S_WO, 16), (S_W1, 32), (S_B, 40), (S_B2, 56), (S_OUT, 64), (S_DBG, 72)):
        p(f"s_load_dwordx2 {sr(s,2)}, s[0:1], {o}")
    p(f"""
    v_and_b32 {vr(V_L)}, 63, v0
    v_lshrrev_b32 v108, 6, v0
    v_lshrrev_b32 v109, 3, {vr(V_L)}
    v_readfirstlane_b32 {sr(S_WV)}, v108
    v_and_b32 v110, 7, {vr(V_L)}
    v_lshrrev_b32 v111, 4, {vr(V_L)}
    v_xor_b32 v112, v110, v111
    v_lshlrev_b32 v112, 4, v112
    v_mov_b32 v113, 896
    v_mad_u32_u24 v96, v109, v113, v112
    v_xor_b32 v97, 64, v96
    v_add_u32 v98, {14336-2048}, v96
    v_add_u32 v99, {21504-3072}, v97
    v_add_u32 v97, {7168-1024}, v97
    s_and_b32 {sr(S_T0)}, s2, 7
    s_lshr_b32 {sr(S_T1)}, s2, 3
    s_and_b32 {sr(S_T2)}, {sr(S_T1)}, 3
    s_lshr_b32 {sr(S_CS)}, {sr(S_T1)}, 2
    s_lshl_b32 {sr(S_RB)}, {sr(S_T0)}, 2
    s_add_u32 {sr(S_RB)}, {sr(S_RB)}, {sr(S_T2)}
    s_lshr_b32 {sr(S_R)}, {sr(S_T0)}, 1
    s_lshl_b32 {sr(S_R)}, {sr(S_R)}, 2
    s_add_u32 {sr(S_R)}, {sr(S_R)}, {sr(S_T2)}
    s_and_b32 {sr(S_J)}, {sr(S_T0)}, 1
    s_lshl_b32 {sr(S_J)}, {sr(S_J)}, 3
    s_add_u32 {sr(S_J)}, {sr(S_J)}, {sr(S_CS)}
    s_lshl_b32 {sr(S_T1)}, {sr(S_T2)}, 1
    s_add_u32 {sr(S_T1)}, {sr(S_T1)}, {sr(S_CS)}
    s_sub_u32 {sr(S_M)}, {sr(S_T1)}, 7
    s_cselect_b32 {sr(S_M)}, {sr(S_T1)}, {sr(S_M)}
    s_mul_i32 {sr(S_WBLK)}, {sr(S_WV)}, {WREG}
    s_lshl_b32 {sr(S_CUR)}, {sr(S_R)}, 2
    s_add_u32 {sr(S_CUR)}, {sr(S_CUR)}, {sr(S_WV)}
    s_mul_i32 {sr(S_ST)}, {sr(S_CUR)}, 28672
    s_mov_b32 {sr(S_X+2)}, 1835008
    s_mov_b32 {sr(S_X+3)}, 0x00020000
    s_mov_b32 {sr(S_WS+2)}, {WS_SIZE}
    s_mov_b32 {sr(S_WS+3)}, 0x00020000
    """)
    for s in range(1, 7):
        p(f"s_add_u32 {sr(S_M+s)}, {sr(S_M+s-1)}, 1\ns_cmp_eq_u32 {sr(S_M+s)}, 7\ns_cselect_b32 {sr(S_M+s)}, 0, {sr(S_M+s)}")
    p("s_waitcnt lgkmcnt(0)")
    stamp(p)
    vm0 = p.vm
    p(f"""
    s_cmp_lg_u32 s2, 0
    s_cbranch_scc1 L_NZ
    v_lshrrev_b32 v112, 2, {vr(V_L)}
    v_and_b32 v113, 3, {vr(V_L)}
    v_lshlrev_b32 v112, 7, v112
    v_lshl_add_u32 v112, v113, 4, v112
    v_mov_b32 v116, 0
    v_mov_b32 v117, 0
    v_mov_b32 v118, 0
    v_mov_b32 v119, 0
    s_mul_i32 {sr(S_T0)}, {sr(S_WV)}, 6144
    s_add_u32 {sr(S_T0)}, {sr(S_T0)}, {WS_FLG}
    buffer_store_dwordx4 v[116:119], v112, {sr(S_WS,4)}, {sr(S_T0)} offen sc1
    buffer_store_dwordx4 v[116:119], v112, {sr(S_WS,4)}, {sr(S_T0)} offen offset:2048 sc1
    s_add_u32 {sr(S_T0)}, {sr(S_T0)}, 4096
    buffer_store_dwordx4 v[116:119], v112, {sr(S_WS,4)}, {sr(S_T0)} offen sc1
    L_NZ:
    """)
    p.vm = vm0
    xt = []
    for s in range(7):
        p(f"s_lshl_b32 {sr(S_T0)}, {sr(S_M+s)}, 7\ns_add_u32 {sr(S_T0)}, {sr(S_T0)}, {sr(S_ST)}\ns_add_u32 m0, {sr(S_WBLK)}, {(12+4*s)*1024}")
        for q in range(4):
            p(f"buffer_load_dwordx4 {vr(96+q)}, {sr(S_X,4)}, {sr(S_T0)} offen offset:{1024*q} lds")
        xt.append(p.vmtag())
    p(f"""
    v_lshl_add_u32 {vr(V_ROW)}, {sr(S_WV)}, 3, v109
    v_lshrrev_b32 v112, 2, v110
    v_and_b32 v113, 1, v111
    v_xor_b32 v112, v112, v113
    v_and_b32 v113, 3, v110
    v_lshlrev_b32 v113, 4, v113
    v_lshl_add_u32 {vr(V_TP)}, v112, 6, v113
    s_movk_i32 {sr(S_T0)}, 2688
    s_movk_i32 {sr(S_K1)}, 896
    v_mad_u32_u24 {vr(V_WA)}, {vr(V_ROW)}, {sr(S_T0)}, v113
    v_mad_u32_u24 {vr(V_WA)}, v112, {sr(S_K1)}, {vr(V_WA)}
    s_mov_b64 {sr(S_W,2)}, {sr(S_WQKV,2)}
    s_mov_b32 {sr(S_W+2)}, 1204224
    s_mov_b32 {sr(S_W+3)}, 0x00020000
    s_mul_i32 {sr(S_T0)}, {sr(S_J)}, 56
    s_and_b32 {sr(S_K2)}, {sr(S_J)}, 1
    s_lshl_b32 {sr(S_K2)}, {sr(S_K2)}, 3
    s_sub_u32 {sr(S_T0)}, {sr(S_T0)}, {sr(S_K2)}
    s_add_u32 {sr(S_T0)}, {sr(S_T0)}, 896
    v_add_u32 {vr(V_WA)}, {sr(S_T0)}, {vr(V_WA)}
    v_add_u32 {vr(V_WB)}, {32*2688-1024}, {vr(V_WA)}
    """)
    for s in range(7):
        p(f"s_mul_i32 {sr(S_C+s)}, {sr(S_M+s)}, {64*2688}")
    wt = {}
    def wpair(s):
        p(f"s_add_u32 m0, {sr(S_WBLK)}, {2*s*1024}")
        if s:
            p(f"buffer_load_dwordx4 {vr(V_WB)}, {sr(S_W,4)}, {sr(S_C+s-1)} offen offset:1024 lds")
            wt[2 * s - 1] = p.vmtag()
        p(f"buffer_load_dwordx4 {vr(V_WA)}, {sr(S_W,4)}, {sr(S_C+s)} offen lds")
        wt[2 * s] = p.vmtag()
    for s in range(6): wpair(s)
    p(f"s_lshl_b32 {sr(S_T1)}, {sr(S_T1)}, 13")
    for q in range(8):
        p(f"s_add_u32 {sr(S_TAB+q)}, {sr(S_T1)}, {q*8192}\ns_and_b32 {sr(S_TAB+q)}, {sr(S_TAB+q)}, 0xffff")
    p(f"""
    s_add_u32 {sr(S_T1)}, {sr(S_T2)}, {sr(S_CS)}
    s_mul_i32 {sr(S_T0)}, {sr(S_T1)}, 11
    s_lshr_b32 {sr(S_T0)}, {sr(S_T0)}, 5
    s_mul_i32 {sr(S_T0)}, {sr(S_T0)}, 3
    s_sub_u32 {sr(S_T1)}, {sr(S_T1)}, {sr(S_T0)}
    s_lshl_b32 {sr(S_T1)}, {sr(S_T1)}, 13
    s_add_u32 {sr(S_TAB+8)}, {sr(S_T1)}, 0x10000
    s_mov_b32 {sr(S_TAB+11)}, {11*8192}
    """)
    for q in (9, 10):
        p(f"s_add_u32 {sr(S_TAB+q)}, {sr(S_TAB+q-1)}, 8192\ns_cmp_eq_u32 {sr(S_TAB+q)}, {sr(S_TAB+11)}\ns_cselect_b32 {sr(S_TAB+q)}, 0x10000, {sr(S_TAB+q)}")
    p(f"""
    s_cmp_eq_u32 {sr(S_CS)}, 7
    s_cselect_b32 {sr(S_W2+2)}, 0, 1605632
    s_mov_b32 {sr(S_W2+3)}, 0x00020000
    s_mov_b32 {sr(S_B+3)}, 0x00020000
    s_mov_b32 {sr(S_OUT+2)}, 1835008
    s_mov_b32 {sr(S_OUT+3)}, 0x00020000
    s_mov_b32 {sr(S_B2+2)}, 896
    s_mov_b32 {sr(S_B2+3)}, 0x00020000
    s_mov_b32 {sr(S_DBG+2)}, 256
    s_mov_b32 {sr(S_DBG+3)}, 0x00020000
    s_lshl_b32 {sr(S_FO)}, {sr(S_CUR)}, 7
    s_lshl_b32 {sr(S_T0)}, {sr(S_J)}, 2
    s_add_u32 {sr(S_FO)}, {sr(S_FO)}, {sr(S_T0)}
    s_add_u32 {sr(S_FO)}, {sr(S_FO)}, {WS_FLG+FL_ROW}
    s_add_u32 {sr(S_KFO)}, {sr(S_T0)}, {sr(S_WV)}
    s_lshl_b32 {sr(S_KFO)}, {sr(S_KFO)}, 7
    s_lshl_b32 {sr(S_T0)}, {sr(S_R)}, 2
    s_add_u32 {sr(S_KFO)}, {sr(S_KFO)}, {sr(S_T0)}
    s_add_u32 {sr(S_KFO)}, {sr(S_KFO)}, {WS_FLG+FL_KF1}
    s_mul_i32 {sr(S_T0)}, {sr(S_WV)}, 14336
    s_lshl_b32 {sr(S_T1)}, {sr(S_CS)}, 7
    s_add_u32 {sr(S_T0)}, {sr(S_T0)}, {sr(S_T1)}
    v_mad_u32_u24 {vr(V_W2)}, v109, {sr(S_K1)}, {vr(V_TP)}
    v_add_u32 {vr(V_W2)}, {sr(S_T0)}, {vr(V_W2)}
    v_add_u32 {vr(V_W2+1)}, {7168-1024}, {vr(V_W2)}
    v_add_u32 {vr(V_W2+2)}, {57344-2048}, {vr(V_W2)}
    v_add_u32 {vr(V_W2+3)}, {64512-3072}, {vr(V_W2)}
    v_lshrrev_b32 v112, 5, {vr(V_L)}
    v_bfe_u32 v113, {vr(V_L)}, 2, 2
    v_lshlrev_b32 v114, 7, v113
    v_bfe_u32 v115, {vr(V_L)}, 3, 1
    v_lshl_add_u32 v114, v115, 6, v114
    v_bfe_u32 v115, {vr(V_L)}, 4, 1
    v_lshl_add_u32 v114, v115, 5, v114
    v_and_b32 v115, 3, {vr(V_L)}
    v_lshl_add_u32 v114, v115, 3, v114
    v_mul_u32_u24 {vr(V_AW)}, {WREG}, v112
    v_add_u32 {vr(V_AW)}, {vr(V_AW)}, v114
    v_xor_b32 {vr(V_AW+1)}, 64, {vr(V_AW)}
    v_add_u32 {vr(V_AW+2)}, {2*WREG}, {vr(V_AW)}
    v_add_u32 {vr(V_AW+3)}, {2*WREG}, {vr(V_AW+1)}
    v_lshl_add_u32 {vr(V_A0)}, v112, 9, v114
    v_add_u32 {vr(V_A0)}, {sr(S_WBLK)}, {vr(V_A0)}
    v_xor_b32 {vr(V_A0+1)}, 64, {vr(V_A0)}
    v_bfe_u32 v113, {vr(V_L)}, 1, 3
    v_xor_b32 v113, v113, v112
    v_lshlrev_b32 v100, 4, v113
    v_lshl_add_u32 v100, v110, 7, v100
    v_bfe_u32 v113, {vr(V_L)}, 3, 2
    v_lshl_add_u32 v100, v113, 10, v100
    s_add_u32 {sr(S_T0)}, {sr(S_WBLK)}, {12*1024}
    v_add_u32 v100, {sr(S_T0)}, v100
    v_xor_b32 v101, 32, v100
    v_xor_b32 v102, 64, v100
    v_xor_b32 v103, 96, v100
    v_lshlrev_b32 {vr(V_L16)}, 4, {vr(V_L)}
    v_and_b32 v113, 31, {vr(V_L)}
    v_lshlrev_b32 {vr(V_BO)}, 1, v113
    v_xor_b32 v114, v110, v112
    v_lshlrev_b32 v114, 4, v114
    v_lshl_add_u32 {vr(V_RW)}, v113, 8, v114
    v_add_u32 {vr(V_RW)}, {sr(S_WBLK)}, {vr(V_RW)}
    v_lshlrev_b32 v114, 1, v110
    v_xor_b32 v114, v114, v109
    v_lshlrev_b32 v114, 4, v114
    v_lshl_add_u32 {vr(V_RR)}, v109, 8, v114
    s_lshl_b32 {sr(S_T0)}, {sr(S_WV)}, 12
    v_add_u32 {vr(V_RR)}, {sr(S_T0)}, {vr(V_RR)}
    v_lshlrev_b32 v114, 4, v110
    v_mad_u32_u24 {vr(V_XO)}, v109, {sr(S_K1)}, v114
    v_and_b32 v114, 15, {vr(V_L)}
    v_lshlrev_b32 v114, 2, v114
    v_bfe_u32 v115, {vr(V_L)}, 4, 1
    v_lshl_add_u32 {vr(V_PA)}, v115, 7, v114
    s_mul_i32 {sr(S_T0)}, {sr(S_RB)}, {2*112*1024}
    s_lshl_b32 {sr(S_T1)}, {sr(S_WV)}, 10
    s_add_u32 {sr(S_T0)}, {sr(S_T0)}, {sr(S_T1)}
    v_add_u32 {vr(V_H)}, {sr(S_T0)}, {vr(V_L16)}
    v_add_u32 {vr(V_H+1)}, {112*1024}, {vr(V_H)}
    v_add_u32 {vr(V_H+2)}, 4096, {vr(V_H)}
    v_add_u32 {vr(V_H+3)}, 4096, {vr(V_H+1)}
    s_mov_b32 {sr(S_LN2)}, 0x3f803f80
    s_mov_b32 {sr(S_K1)}, 0x00003f80
    s_mov_b32 {sr(S_K2)}, 0x3f800000
    s_mov_b32 {sr(S_EPS)}, 0x35c1a2a0
    v_mov_b32 v104, 0
    v_mov_b32 v105, 0
    v_mov_b32 v106, 0
    v_mov_b32 v107, 0
    """)
    p(next_h(sr(S_J)))
    for i in range(V_B0, V_XA + 4):
        p(f"v_mov_b32 {vr(i)}, 0")
    def stats(v):
        for i in range(16):
            x = V_X + 16 * v + i
            p(f"v_dot2c_f32_bf16 {vr(104+(i&1))}, {sr(S_LN2)}, {vr(x)}")
            p(f"v_dot2c_f32_bf16 {vr(106+(i&1))}, {vr(x)}, {vr(x)}")
    def freed(s):
        if s == 0: wpair(6)
        if s >= 2: w2_dma_block(p, cx, s - 2, s - 2)
    stamp(p)
    lt = []
    for v in range(7):
        p.wait_vm(xt[v])
        if v == 0:
            vm0 = p.vm
            p(f"""
            s_cmp_lg_u32 s2, 0
            s_cbranch_scc1 L_NC
            v_mov_b32 v116, 1
            s_lshl_b32 {sr(S_T0)}, {sr(S_WV)}, 2
            buffer_store_dword v116, off, {sr(S_DBG,4)}, {sr(S_T0)} sc1
            L_NC:
            """)
            p.vm = vm0
        for k in range(4):
            p(f"ds_read_b128 {vr(V_X+16*v+4*k,4)}, {vr(100+k)} offset:{v*4096}")
        lt.append(p.lgtag())
        if v >= 1:
            p.wait_lg(lt[v - 1])
            freed(v - 1)
            stats(v - 1)
    p.wait_lg(lt[6])
    freed(6)
    stats(6)
    stamp(p)
    p(f"""
    v_add_f32 v104, v104, v105
    v_add_f32 v106, v106, v107
    v_mov_b32 v105, v104
    v_mov_b32 v107, v106
    v_permlane32_swap_b32 v104, v105
    v_permlane32_swap_b32 v106, v107
    v_add_f32 v104, v104, v105
    v_add_f32 v106, v106, v107
    v_mul_f32 v104, 0x3b124925, v104
    v_mul_f32 v106, 0x3b124925, v106
    v_fma_f32 v106, -v104, v104, v106
    v_max_f32 v106, 0, v106
    v_cvt_pk_bf16_f32 v105, v104, v106
    v_and_b32 v106, 0xffff0000, v105
    v_lshlrev_b32 v104, 16, v105
    v_add_f32 v106, 0x3727c5ac, v106
    v_cvt_pk_bf16_f32 v106, v106, v106
    v_and_b32 v106, 0xffff0000, v106
    v_sqrt_f32 v106, v106
    v_xor_b32 v104, 0x80000000, v104
    v_cvt_pk_bf16_f32 v106, v106, v106
    v_and_b32 v107, 0xffff0000, v106
    v_rcp_f32 {vr(V_RS)}, v107
    v_and_b32 v106, 0xffff, v106
    v_cmp_gt_u32 vcc, 32, {vr(V_L)}
    s_mov_b32 {sr(S_LN2)}, 0x3f317218
    v_mul_f32 {vr(V_RSL)}, {hex(LOG2E)}, {vr(V_RS)}
    v_cndmask_b32 {vr(V_XA)}, 0, v106, vcc
    """)
    p.wait_vm(wt[1])
    p("s_barrier")
    cx.rt = {}
    for e in range(3):
        ring_reads(p, e, 0); ring_reads(p, e, 1)
        cx.rt[e] = p.lgtag()
    return {u: p.vm - t for u, t in wt.items()}

def bias_mfma(h):
    return f"v_mfma_f32_32x32x16_bf16 {vr(V_ACC+16*h,16)}, {vr(V_B0+2*h,4)}, {vr(V_XA,4)}, 0"
def head_save(p, cx, s0, s1, pre=None):
    if pre: p(pre)
    for i in range(16): p(s0(i))
    p(f"s_waitcnt vmcnt({cx.ea('b')})")
    p(bias_mfma(0))
    for i in range(16, 32): p(s1(i))
    p(bias_mfma(1))

def w2_stream(cx, reads, dmas):
    its = []
    rtag = {}
    def R(pr):
        l = w2_read_items(cx, pr, pr % 5)
        def mark(p): rtag[pr] = p.lgtag()
        return l + [F(mark, 0)]
    def D(pr):
        return [F(lambda p: p.wait_lg(rtag[pr - 5]), 1)] + w2_dma_items(cx, pr, pr % 5)
    seq = [R(reads[0])]
    for i in range(1, len(reads)):
        seq.append(R(reads[i]))
        if i - 1 < len(dmas): seq.append(D(dmas[i - 1]))
    for i in range(len(reads) - 1, len(dmas)): seq.append(D(dmas[i]))
    for s in seq: its += s
    return its

def pass0(p, cx, ea):
    dq = []
    for s in range(7): dq += d_items(s)
    n = len(dq) // 28
    g = Gaps(56)
    for e in range(2, 28):
        q = dq[n * e:n * e + n]
        for i, it in enumerate(q): g.put(2 * (e - 2) + (0 if i < n // 2 else 1), it)
    g.put(52, f"""s_add_u32 {sr(S_CUR)}, {sr(S_J)}, 8
    s_cmp_eq_u32 {sr(S_J)}, 7
    s_cselect_b32 {sr(S_CUR)}, 24, {sr(S_CUR)}
    s_cmp_lt_u32 {sr(S_J)}, 7
    s_cselect_b32 {sr(S_CUR)}, {sr(S_J)}, {sr(S_CUR)}
    s_cselect_b64 {sr(S_NB,2)}, {sr(S_WQKV,2)}, {sr(S_W1,2)}
    s_cselect_b32 {sr(S_NSTR)}, 0, 896""")
    g.put(53, f"""s_cmp_lt_u32 {sr(S_J)}, 7
    s_cselect_b32 {sr(S_NBREC)}, 0, 3584
    s_add_u32 {sr(S_NSTR)}, {sr(S_NSTR)}, 2688
    s_mul_i32 {sr(S_NREC)}, {sr(S_NSTR)}, 448
    s_lshl_b32 {sr(S_NCOL)}, {sr(S_CUR)}, 7
    s_mov_b32 {sr(S_NBOFF)}, {sr(S_NCOL)}
    s_lshl_b32 {sr(S_NST2)}, {sr(S_NSTR)}, 6""")
    def conf(p):
        p(f"v_and_b32 v96, 12, {vr(V_PA)}")
        p(f"buffer_load_dword {vr(V_PF)}, v96, {sr(S_DBG,4)}, 0 offen sc1")
        cx.ctag = p.vmtag()
    g.put(54, F(conf, 2))
    g.put(55, f"""s_and_b32 {sr(S_T0)}, {sr(S_J)}, 1
    s_sub_u32 {sr(S_MEV+1)}, {sr(S_T0)}, 1
    s_mov_b32 {sr(S_MEV)}, 0
    s_sub_u32 {sr(S_MOD)}, 0, {sr(S_T0)}
    s_mov_b32 {sr(S_MOD+1)}, 0""")
    def head(p):
        p(bias_mfma(0)); p(bias_mfma(1))
        for it in dq[:2 * n]: p(it)
        stamp(p)
    gen_pass(p, cx, "P0", g, head, ea)

def pass1(p, cx):
    g = Gaps(56)
    A = phi_items(0, 16, 96)
    A.append(f"v_cndmask_b32 {vr(V_SV+16)}, {vr(V_SV+16)}, 1.0, {sr(S_MOD,2)}\nv_cndmask_b32 {vr(V_SV+28)}, {vr(V_SV+28)}, 1.0, {sr(S_MEV,2)}")
    for i in range(0, 8, 2):
        A.append("\n".join(f"v_cvt_pk_bf16_f32 {vr(V_SV+8+k)}, {vr(V_SV+16+2*k)}, {vr(V_SV+17+2*k)}" for k in (i, i + 1)))
    A += f"""v_and_b32 v100, 31, {vr(V_L)}
    v_and_b32 v101, 7, {vr(V_L)}
    v_lshlrev_b32 v100, 7, v100
    v_lshl_add_u32 v100, v101, 4, v100
    v_lshrrev_b32 v101, 5, {vr(V_L)}
    v_lshl_add_u32 v100, v101, 3, v100
    s_add_u32 {sr(S_T0)}, {sr(S_WBLK)}, {SCR}\nv_add_u32 v100, {sr(S_T0)}, v100""".split("\n    ")
    for c in range(8):
        A.append(f"v_xor_b32 {vr(101+(c&1))}, {c*16}, v100\nds_write_b64 {vr(101+(c&1))}, {vr(V_SV+2*c,2)}")
    A.append(F(lambda p: setattr(cx, "kwt", p.lgtag()), 0))
    gi = g.spread(A, 0, cap=OPT["capA"])
    v = 1
    while 2 * (4 * v - 3) <= gi: v += 1
    cx.pre_bar[("P1", v)] = lambda p: p.wait_lg(cx.kwt)
    gb = 2 * (4 * v - 3)
    B = f"""v_lshrrev_b32 v128, 4, {vr(V_L)}
    v_bfe_u32 v129, {vr(V_L)}, 2, 2
    v_lshl_add_u32 v128, v128, 3, v129
    v_lshlrev_b32 v128, 7, v128
    v_bfe_u32 v130, {vr(V_L)}, 1, 1
    v_xor_b32 v129, v129, v130
    v_lshl_add_u32 v128, v129, 4, v128
    v_and_b32 v130, 1, {vr(V_L)}
    v_lshl_add_u32 v128, v130, 3, v128
    v_add_u32 v128, {SCR}, v128
    s_and_b32 {sr(S_T0)}, {sr(S_WV)}, 1\ns_lshl_b32 {sr(S_T0)}, {sr(S_T0)}, 5\nv_xor_b32 v129, {sr(S_T0)}, v128
    s_lshr_b32 {sr(S_T0)}, {sr(S_WV)}, 1\ns_lshl_b32 {sr(S_T0)}, {sr(S_T0)}, 5\ns_add_u32 {sr(S_T0)}, {sr(S_T0)}, 64\nv_xor_b32 v130, {sr(S_T0)}, v128
    v_xor_b32 v128, 64, v129
    v_xor_b32 v131, 64, v130
    v_add_u32 v132, {2*WREG}, v129
    v_add_u32 v133, {2*WREG}, v128
    v_add_u32 v134, {2*WREG}, v130
    v_add_u32 v135, {2*WREG}, v131
    s_lshl_b32 {sr(S_ST)}, {sr(S_J)}, 4\ns_add_u32 {sr(S_ST)}, {sr(S_ST)}, {sr(S_R)}\ns_lshl_b32 {sr(S_ST)}, {sr(S_ST)}, 12
    s_lshl_b32 {sr(S_T0)}, {sr(S_WV)}, 10\ns_add_u32 {sr(S_ST)}, {sr(S_ST)}, {sr(S_T0)}\ns_add_u32 {sr(S_ST)}, {sr(S_ST)}, {WS_KVP}""".split("\n    ")
    g.spread(B, 0, cap=OPT["capA"] + 1, end=gb)
    C = []
    tg = {}
    for m in range(4):
        aa = (129, 128, 130, 131) if m < 2 else (132, 133, 134, 135)
        o = (m & 1) * WREG
        C.append(f"ds_read_b64_tr_b16 {vr(96+8*m,2)}, v{aa[0]} offset:{o}\nds_read_b64_tr_b16 {vr(96+8*m+2,2)}, v{aa[1]} offset:{o+512}")
        C.append(f"ds_read_b64_tr_b16 {vr(96+8*m+4,2)}, v{aa[2]} offset:{o}\nds_read_b64_tr_b16 {vr(96+8*m+6,2)}, v{aa[3]} offset:{o+512}")
        C.append(F(lambda p, m=m: tg.__setitem__(m, p.lgtag()), 0))
    gi = g.spread(C, gb, cap=4)
    for m in range(4):
        def mm(p, m=m):
            p.wait_lg(tg[m])
            p(f"v_mfma_f32_16x16x32_bf16 {vr(V_SV,4)}, {vr(96+8*m,4)}, {vr(96+8*m+4,4)}, {'0' if m == 0 else vr(V_SV,4)}")
        g.put(gi + 3 + m, F(mm, 2))
    def kst(p):
        p(f"buffer_store_dwordx4 {vr(V_SV,4)}, {vr(V_L16)}, {sr(S_WS,4)}, {sr(S_ST)} offen sc1")
        cx.sttag = p.vmtag()
    g.put(gi + 8, F(kst, 1))
    def kpost(p):
        p.wait_vm(cx.sttag)
        spin_check(p, "L_CF", f"buffer_load_dword {vr(V_PF)}, v96, {sr(S_DBG,4)}, 0 offen sc1",
                   f"v_and_b32 v96, 12, {vr(V_PA)}\nv_cmp_ne_u32 vcc, 1, {vr(V_PF)}")
        p(post(1, sr(S_KFO)))
    g.put(min(55, gi + 8 + OPT["kf1"]), F(kpost, 6))
    g.spread(w2_stream(cx, [0, 1, 2, 3, 4], [5, 6, 7, 8, 9]), 2, cap=OPT["capB"], end=50)
    gen_pass(p, cx, "P1", g, lambda p: head_save(p, cx, save_phi, save_mul), cx.exit_after)

def pass2(p, cx):
    g = Gaps(56)
    gi = g.spread(h_items(cx), 0, cap=OPT["capA"])
    def fpost(p):
        p.wait_vm(cx.sttag)
        p(post(1, sr(S_FO)))
    g.put(gi + OPT["fl1"], F(fpost, 3))
    W = w2_stream(cx, [5, 6, 7, 8, 9], [10, 11, 12, 13])
    g.spread(W, gi + 1, cap=OPT["capB"], end=52)
    g.put(48, f"""s_add_u32 m0, {sr(S_WBLK)}, {15*1024}
    buffer_load_dwordx4 {vr(V_WB)}, {sr(S_W,4)}, {sr(S_C+6)} offen offset:1024 lds""")
    def pa(p):
        p(f"s_lshl_b32 {sr(S_PROG)}, {sr(S_RB)}, 8\ns_add_u32 {sr(S_PROG)}, {sr(S_PROG)}, {WS_FLG+FL_ROW}")
        p(f"buffer_load_dword {vr(V_PF)}, {vr(V_PA)}, {sr(S_WS,4)}, {sr(S_PROG)} offen sc1")
        cx.ptag = p.vmtag()
    g.put(53, F(pa, 3))
    pre = f"""s_mov_b64 {sr(S_NB,2)}, {sr(S_WO,2)}
    s_mov_b32 {sr(S_NREC)}, 401408
    s_movk_i32 {sr(S_NSTR)}, 896
    s_mov_b32 {sr(S_NST2)}, 14336
    s_mul_i32 {sr(S_NCOL)}, {sr(S_WV)}, {104*896}
    s_lshl_b32 {sr(S_T0)}, {sr(S_CS)}, 7
    s_add_u32 {sr(S_NCOL)}, {sr(S_NCOL)}, {sr(S_T0)}
    """ + "\n".join(f"s_mov_b32 {sr(S_M+c)}, {c}" for c in range(7)) + "\n" + f"""
    s_lshl_b32 {sr(S_ST)}, {sr(S_J)}, 6
    s_lshl_b32 {sr(S_T0)}, {sr(S_R)}, 2
    s_add_u32 {sr(S_ST)}, {sr(S_ST)}, {sr(S_T0)}
    s_add_u32 {sr(S_ST)}, {sr(S_ST)}, {sr(S_WV)}
    s_lshl_b32 {sr(S_ST)}, {sr(S_ST)}, 7
    s_add_u32 {sr(S_ST)}, {sr(S_ST)}, {WS_RS}
    v_mul_f32 v96, {vr(V_RS)}, {vr(V_RS)}
    v_lshlrev_b32 v97, 1, {vr(V_BO)}
    buffer_store_dword v96, v97, {sr(S_WS,4)}, {sr(S_ST)} offen sc1
    """ + st_addr_h(sr(S_J))
    gen_pass(p, cx, "P2", g, lambda p: head_save(p, cx, save_max, save_max, pre), cx.exit_after, last=True)

def pass2i(p, cx, ea, rta, red):
    g = Gaps(56)
    gi = g.spread(h_items(cx), 0, cap=OPT["capA"])
    def fpost(p):
        p.wait_vm(cx.sttag)
        p(post(sr(S_PROG), sr(S_FO)))
    g.put(gi + OPT["fl1"], F(fpost, 3))
    if red:
        RS = sr(S_WS, 4)
        reload = f"buffer_load_dword {vr(V_PF)}, {vr(V_PK)}, {RS}, {sr(S_T1)} offen sc1"
        def rp(p):
            p(reload); cx.ptag = p.vmtag()
        g.put(OPT["rchk"] - 6, F(rp, 1))
        def rc(p):
            p.wait_vm(cx.ptag)
            spin_check(p, "L_RK", reload, f"v_cmp_ne_u32 vcc, 1, {vr(V_PF)}")
            p(f"""s_lshl_b32 {sr(S_T1)}, {sr(S_R)}, 16
            s_lshl_b32 {sr(S_T0)}, {sr(S_WV)}, 10
            s_add_u32 {sr(S_T1)}, {sr(S_T1)}, {sr(S_T0)}
            s_add_u32 {sr(S_T1)}, {sr(S_T1)}, {WS_KVP}""")
        g.put(OPT["rchk"], F(rc, 8))
        lt = {}
        def dst(k): return 96 + 4 * k if k < 10 else V_SV + 4 * (k - 10)
        def ld(k):
            def f(p):
                p(f"buffer_load_dwordx4 {vr(dst(k),4)}, {vr(V_L16)}, {RS}, {sr(S_T1)} offen")
                lt[k] = p.vmtag()
                p(f"s_add_u32 {sr(S_T1)}, {sr(S_T1)}, 4096")
            return F(f, 2)
        g2_ = g.spread([ld(k) for k in range(10)], OPT["rchk"] + 1, cap=OPT["capB"] + 1)
        g3 = g.spread([ld(k) for k in range(10, 16)], max(g2_, gi + 1), cap=OPT["capB"] + 1)
        M = f"""s_and_b32 {sr(S_T0)}, {sr(S_R)}, 1
    s_cmp_eq_u32 {sr(S_T0)}, 0\ns_cselect_b32 {sr(S_MEV)}, 0x1fffffff, 0xfffffff1
    s_lshr_b32 {sr(S_T2)}, {sr(S_WV)}, 1\ns_lshl_b32 {sr(S_T2)}, {sr(S_T2)}, 4\ns_lshr_b32 {sr(S_MEV)}, {sr(S_MEV)}, {sr(S_T2)}
    s_and_b32 {sr(S_MEV)}, {sr(S_MEV)}, 0xffff\ns_mul_i32 {sr(S_MEV)}, {sr(S_MEV)}, 0x10001\ns_mov_b32 {sr(S_MEV+1)}, {sr(S_MEV)}
    s_lshl_b32 {sr(S_T0)}, {sr(S_T0)}, 1\ns_and_b32 {sr(S_T2)}, {sr(S_WV)}, 1\ns_or_b32 {sr(S_T0)}, {sr(S_T0)}, {sr(S_T2)}
    s_cmp_eq_u32 {sr(S_T0)}, 2\ns_cselect_b32 {sr(S_T2)}, 0xffff0000, -1\ns_and_b32 {sr(S_MEV)}, {sr(S_MEV)}, {sr(S_T2)}
    s_cmp_eq_u32 {sr(S_T0)}, 1\ns_cselect_b32 {sr(S_T2)}, 0xffff, -1\ns_and_b32 {sr(S_MEV+1)}, {sr(S_MEV+1)}, {sr(S_T2)}
    v_and_b32 v136, 15, {vr(V_L)}\nv_lshrrev_b32 v137, 5, {vr(V_L)}\nv_lshl_add_u32 v136, v137, 5, v136
    v_lshlrev_b32 v136, 4, v136\nv_bfe_u32 v137, {vr(V_L)}, 4, 1\nv_lshl_add_u32 v136, v137, 3, v136
    s_lshl_b32 {sr(S_T1)}, {sr(S_R)}, 11\ns_and_b32 {sr(S_T0)}, {sr(S_WV)}, 1\ns_lshl_b32 {sr(S_T0)}, {sr(S_T0)}, 10\ns_add_u32 {sr(S_T1)}, {sr(S_T1)}, {sr(S_T0)}
    s_lshr_b32 {sr(S_T0)}, {sr(S_WV)}, 1\ns_lshl_b32 {sr(S_T0)}, {sr(S_T0)}, 8\ns_add_u32 {sr(S_T1)}, {sr(S_T1)}, {sr(S_T0)}\ns_add_u32 {sr(S_T1)}, {sr(S_T1)}, {WS_KVF}""".split("\n    ")
        g4 = g.spread(M, g3 + 1, cap=4)
        A = []
        for k in range(1, 16):
            def ad(p, k=k):
                p.wait_vm(lt[k])
                for i in range(4): p(f"v_add_f32 {vr(96+i)}, {vr(96+i)}, {vr(dst(k)+i)}")
            A.append(F(ad, 5))
        A.append("\n".join(f"v_cndmask_b32 {vr(96+i)}, 0, {vr(96+i)}, {sr(S_MEV,2)}" for i in range(4)))
        A.append("v_cvt_pk_bf16_f32 v100, v96, v97\nv_cvt_pk_bf16_f32 v101, v98, v99")
        def ks(p):
            p(f"buffer_store_dwordx2 v[100:101], v136, {RS}, {sr(S_T1)} offen sc1")
            cx.ktag = p.vmtag()
        A.append(F(ks, 1))
        g5 = g.spread(A, max(g4, OPT.get("radd", 34)), cap=5)
        assert g5 < 55
    pre = f"""s_add_u32 {sr(S_T2)}, {sr(S_CUR)}, 2
    """ + next_h(sr(S_T2)) + "\n" + st_addr_h(sr(S_PRV)) + f""""""
    if red: pre += f"""
    s_lshl_b32 {sr(S_T1)}, {sr(S_R)}, 2
    s_add_u32 {sr(S_T1)}, {sr(S_T1)}, {sr(S_WV)}
    s_lshl_b32 {sr(S_T1)}, {sr(S_T1)}, 7
    s_add_u32 {sr(S_T1)}, {sr(S_T1)}, {WS_FLG+FL_KF1}
    v_and_b32 {vr(V_PK)}, 63, {vr(V_PA)}"""
    cx.rt = {k: p.lg - rta[k] for k in range(3)}
    gen_pass(p, cx, "P2I", g, lambda p: head_save(p, cx, save_max, save_max, pre), ea)
    if red:
        p.wait_vm(cx.ktag)
        p(f"""
    s_lshr_b32 {sr(S_T0)}, {sr(S_R)}, 2
    s_lshl_b32 {sr(S_T0)}, {sr(S_T0)}, 7
    s_and_b32 {sr(S_T1)}, {sr(S_R)}, 3
    s_lshl_b32 {sr(S_T1)}, {sr(S_T1)}, 2
    s_add_u32 {sr(S_T1)}, {sr(S_T1)}, {sr(S_WV)}
    s_lshl_b32 {sr(S_T1)}, {sr(S_T1)}, 2
    s_add_u32 {sr(S_T0)}, {sr(S_T0)}, {sr(S_T1)}
    s_add_u32 {sr(S_T0)}, {sr(S_T0)}, {WS_FLG+FL_KF2}
    v_mov_b32 {vr(V_FT)}, 1
    buffer_store_dword {vr(V_FT)}, off, {RS}, {sr(S_T0)} sc1
    """)
        cx.exit_after = {u: n + 1 for u, n in cx.exit_after.items()}
    p(f"""
    s_mov_b32 {sr(S_PRV)}, {sr(S_CUR)}
    s_add_u32 {sr(S_CUR)}, {sr(S_CUR)}, 2
    s_add_u32 {sr(S_PROG)}, {sr(S_PROG)}, 1
    """)

def emit_items(p, its):
    for it in its:
        if isinstance(it, str): p(it)
        else: it(p)

def idle_path(p, cx, ea1, rta1):
    ea, rta = dict(ea1), dict(rta1)
    for red in (True, False):
        q = Prog(); c2 = Ctx(); c2.pre_bar = {}; c2.w2t = {}
        q.vm = q.lg = 1000
        pass2i(q, c2, ea1, rta1, red)
        ea = {u: min(ea[u], c2.exit_after[u]) for u in ea1}
        rta = {k: min(rta[k], c2.rt_after[k]) for k in rta1}
    p(f"L_IDLE:\ns_mov_b32 {sr(S_PROG)}, 1\ns_mov_b32 {sr(S_PRV)}, {sr(S_J)}")
    p(f"s_cmp_lg_u32 {sr(S_J)}, 7\ns_cbranch_scc1 L_ILOOP")
    stamp(p)
    pass2i(p, cx, ea1, rta1, True)
    p("L_ILOOP:")
    stamp(p)
    pass2i(p, cx, ea, rta, False)
    p(f"s_cmp_lt_u32 {sr(S_CUR)}, 28\ns_cbranch_scc1 L_ILOOP")
    stamp(p)
    p(st_addr_h(sr(S_PRV)))
    p("s_nop 7")
    for i in range(32): p(save_max(i))
    emit_items(p, h_items(cx))
    p("s_waitcnt vmcnt(0)")
    p(post(sr(S_PROG), sr(S_FO)))
    stamp_out(p)
    p("s_endpgm")

def phase2(p, cx):
    ACC, OT, OB, TM = 32, 208, 240, 24
    PQ, KV, WOF, ACS = 0, 64, 96, 128
    XD, B2 = 100, 96
    S_XO, S_PK, S_MLO, S_MHI = S_CUR, S_NXT, S_MEV, S_MOD
    rowpoll = f"buffer_load_dword {vr(V_PF)}, {vr(V_PA)}, {sr(S_WS,4)}, {sr(S_PROG)} offen sc1"
    def buf(u):
        if u < 14: return "v", 144 + 8 * u
        if u < 19: return "v", 96 + 8 * (u - 14)
        if u < 23: return "a", 224 + 8 * (u - 19)
        return "v", 144 + 8 * (u - 23)
    def rr(k, a, n): return vr(a, n) if k == "v" else ar(a, n)
    ut = {}
    def load(u):
        k, a = buf(u)
        pr = u >> 1
        if pr < 12: so = sr(S_TAB + pr)
        else:
            so = sr(S_T0); p(f"s_mov_b32 {so}, {pr*8192}")
        for rt in range(2):
            p(f"buffer_load_dwordx4 {rr(k,a+4*rt,4)}, {vr(V_H+2*(u&1)+rt)}, {sr(S_WS,4)}, {so} offen")
        ut[u] = p.vmtag()
    def unit(u, mid=None):
        k, a = buf(u)
        p.wait_vm(ut[u])
        for ct in range(2):
            for rt in range(2):
                d = ACC + 32 * ct + 16 * rt
                p(f"v_mfma_f32_32x32x16_bf16 {vr(d,16)}, {ar(8*u+4*ct,4)}, {rr(k,a+4*rt,4)}, {'0' if u == 0 else vr(d,16)}")
                if mid and ct == 0 and rt == 0: mid()
    stamp(p)
    vm0, lg0 = p.vm, p.lg
    p(f"s_cmp_lt_u32 {sr(S_J)}, 7\ns_cbranch_scc1 L_EQ")
    p(st_addr_h(sr(S_CUR)))
    for i in range(32): p(save_max(i))
    emit_items(p, h_items(cx))
    p("s_branch L_EJ\nL_EQ:")
    p.vm = vm0
    p(f"""
    s_lshl_b32 {sr(S_ST)}, {sr(S_R)}, 2
    s_add_u32 {sr(S_ST)}, {sr(S_ST)}, {sr(S_WV)}
    s_mul_i32 {sr(S_ST)}, {sr(S_ST)}, {56*512}
    s_lshl_b32 {sr(S_T0)}, {sr(S_CUR)}, 12
    s_add_u32 {sr(S_ST)}, {sr(S_ST)}, {sr(S_T0)}
    s_add_u32 {sr(S_ST)}, {sr(S_ST)}, {WS_PQ}
    """)
    for i in range(32): p(save_phi(i))
    emit_items(p, q_items(cx, 96))
    p("L_EJ:")
    stamp(p)
    p.wait_vm(cx.ptag)
    spin_check(p, "L_PA", rowpoll, f"v_cmp_gt_u32 vcc, 1, {vr(V_PF)}")
    stamp(p)
    for u in range(OPT["n0"]): load(u)
    for pr in range(10, 14): emit_items(p, w2_read_items(cx, pr, pr % 5))
    p(f"""
    s_lshl_b32 {sr(S_XO)}, {sr(S_RB)}, 2
    s_add_u32 {sr(S_XO)}, {sr(S_XO)}, {sr(S_WV)}
    s_mul_i32 {sr(S_XO)}, {sr(S_XO)}, {16*896}
    s_lshl_b32 {sr(S_T1)}, {sr(S_CS)}, 7
    s_add_u32 {sr(S_XO)}, {sr(S_XO)}, {sr(S_T1)}
    s_lshl_b32 {sr(S_PK)}, {sr(S_WV)}, 7
    s_add_u32 {sr(S_PK)}, {sr(S_PK)}, {WS_FLG+FL_KF2}
    s_mov_b32 {sr(S_MLO)}, -1
    s_mov_b32 {sr(S_MLO+1)}, 0
    s_mov_b32 {sr(S_MHI)}, 0
    s_mov_b32 {sr(S_MHI+1)}, -1
    v_and_b32 v22, 63, {vr(V_PA)}
    v_mov_b32 v23, 0
    v_cmp_eq_u32 vcc, 28, v22
    v_cndmask_b32 v23, v23, 3, vcc
    v_cmp_eq_u32 vcc, 60, v22
    v_cndmask_b32 v23, v23, 4, vcc
    v_min_u32 v19, 2, v23
    v_sub_u32 v20, 2, v19
    v_lshrrev_b32 v18, 3, {vr(V_L)}
    v_lshlrev_b32 v18, 2, v18
    v_and_b32 v21, 7, {vr(V_L)}
    v_lshlrev_b32 v21, 4, v21
    """)
    p.wait_vm(cx.sttag)
    p(post(2, sr(S_FO)))
    p("s_barrier")
    stamp(p)
    for u in range(OPT["n0"], 16): load(u)
    stamp(p)
    kvpoll = f"buffer_load_dword {vr(V_PK)}, v22, {sr(S_WS,4)}, {sr(S_PK)} offen sc1"
    P0 = (0, 3, 7, 10)
    htag = {}
    def issue_b():
        p(rowpoll); cx.ptag = p.vmtag()
    def issue_k():
        p(rowpoll); p(kvpoll); cx.ptag = p.vmtag()
    def check_b():
        p.wait_vm(cx.ptag)
        spin_check(p, "L_PB", rowpoll, f"v_cmp_gt_u32 vcc, v20, {vr(V_PF)}")
        for u in range(16, 23): load(u)
        p(f"""
        s_mul_i32 {sr(S_T1)}, {sr(S_RB)}, {2*56*512}
        s_mul_i32 {sr(S_T2)}, {sr(S_WV)}, {14*512}
        s_add_u32 {sr(S_T1)}, {sr(S_T1)}, {sr(S_T2)}
        s_add_u32 {sr(S_T1)}, {sr(S_T1)}, {WS_PQ}
        """)
        for hh in range(4):
            for rt in range(2):
                p(f"s_add_u32 {sr(S_T2)}, {sr(S_T1)}, {rt*56*512 + P0[hh]*512}")
                for ks in range(2):
                    p(f"buffer_load_dwordx4 {ar(PQ+16*hh+8*rt+4*ks,4)}, {vr(V_L16)}, {sr(S_WS,4)}, {sr(S_T2)} offen offset:{ks*1024}")
    def check_k():
        p.wait_vm(cx.ptag)
        spin_check(p, "L_PI", rowpoll, f"v_cmp_gt_u32 vcc, v19, {vr(V_PF)}")
        for u in range(23, 25): load(u)
        spin_check(p, "L_PK", kvpoll, f"v_cmp_ne_u32 vcc, 1, {vr(V_PK)}")
        p(f"""
        s_lshl_b32 {sr(S_T0)}, {sr(S_WV)}, 13
        s_add_u32 {sr(S_T0)}, {sr(S_T0)}, {WS_KVF}
        """)
        for hh in range(4):
            for ks in range(2):
                o = (2 * hh + ks) * 1024
                if o == 4096: p(f"s_add_u32 {sr(S_T0)}, {sr(S_T0)}, 4096")
                p(f"buffer_load_dwordx4 {ar(KV+8*hh+4*ks,4)}, {vr(V_L16)}, {sr(S_WS,4)}, {sr(S_T0)} offen offset:{o%4096}")
            htag[hh] = p.vmtag()
    p("s_waitcnt lgkmcnt(0)")
    def issue_l():
        p(rowpoll); cx.ptag = p.vmtag()
    for u in range(25):
        unit(u, {OPT["pbi"]: issue_b, OPT["pki"]: issue_k, 24: issue_l}.get(u))
        if u == OPT["pbc"]:
            stamp(p)
            check_b()
            stamp(p)
        if u == OPT["pkc"]:
            stamp(p)
            check_k()
            stamp(p)
    stamp(p)
    def check_l():
        p.wait_vm(cx.ptag)
        spin_check(p, "L_PL", rowpoll, f"v_cmp_gt_u32 vcc, v23, {vr(V_PF)}")
        for u in range(25, 28): load(u)
        p(f"buffer_load_dwordx4 {vr(XD,4)}, {vr(V_XO)}, {sr(S_X,4)}, {sr(S_XO)} offen")
        p(f"s_add_u32 {sr(S_ST)}, {sr(S_XO)}, 7168")
        p(f"s_lshl_b32 {sr(S_T1)}, {sr(S_CS)}, 7")
        p(f"buffer_load_dwordx4 {vr(XD+4,4)}, {vr(V_XO)}, {sr(S_X,4)}, {sr(S_ST)} offen")
        p(f"buffer_load_dwordx4 {vr(B2,4)}, v21, {sr(S_B2,4)}, {sr(S_T1)} offen")
        p(f"""
        s_lshl_b32 {sr(S_T1)}, {sr(S_J)}, 7
        s_lshl_b32 {sr(S_T0)}, {sr(S_RB)}, 2
        s_add_u32 {sr(S_T1)}, {sr(S_T1)}, {sr(S_T0)}
        s_add_u32 {sr(S_T1)}, {sr(S_T1)}, {sr(S_WV)}
        s_lshl_b32 {sr(S_T1)}, {sr(S_T1)}, 6
        s_add_u32 {sr(S_T1)}, {sr(S_T1)}, {WS_RS}
        buffer_load_dword v108, v18, {sr(S_WS,4)}, {sr(S_T1)} offen
        buffer_load_dword v110, v18, {sr(S_WS,4)}, {sr(S_T1)} offen offset:32
        """)
        cx.xtag = p.vmtag()
    for hh in range(4):
        wf = WOF + 16 * (hh & 1)
        for q in range(2):
            for ct in range(2):
                for t in range(2):
                    p(f"ds_read_b64_tr_b16 {ar(wf+8*q+4*ct+2*t,2)}, {vr(V_A0+ct)} offset:{wpos(P0[hh]+2*q+t)*1024}")
        p.wait_vm(htag[hh])
        for ks in range(2):
            for rt in range(2):
                c = "0" if ks == 0 else vr(OT + 16 * rt, 16)
                p(f"v_mfma_f32_32x32x16_bf16 {vr(OT+16*rt,16)}, {ar(KV+8*hh+4*ks,4)}, {ar(PQ+16*hh+8*rt+4*ks,4)}, {c}")
        if hh == OPT.get("plc", 2):
            stamp(p)
            check_l()
            stamp(p)
        zi = 0 if hh & 1 else 12
        for rt in range(2):
            o = OT + 16 * rt
            p(f"v_mov_b32 {vr(TM)}, {vr(o+zi)}")
            p(f"v_mov_b32 {vr(TM+1)}, {vr(o+zi)}")
            p(f"v_permlane32_swap_b32 {vr(TM)}, {vr(TM+1)}")
            d = TM if hh & 1 else TM + 1
            p(f"v_add_f32 {vr(TM+2)}, 0x358637bd, {vr(d)}")
            p(f"v_rcp_f32 {vr(TM+2)}, {vr(TM+2)}")
            p(f"v_cndmask_b32 {vr(o+zi)}, {vr(o+zi)}, 0, {sr(S_MLO if hh & 1 else S_MHI,2)}")
            for i in range(8):
                p(f"v_pk_mul_f32 {vr(o+2*i,2)}, {vr(o+2*i,2)}, {vr(TM+2,2)} op_sel_hi:[1,0]")
            for i in range(8):
                p(f"v_cvt_pk_bf16_f32 {vr(OB+8*rt+i)}, {vr(o+2*i)}, {vr(o+2*i+1)}")
        p("s_waitcnt lgkmcnt(0)")
        for q in range(2):
            for ct in range(2):
                for rt in range(2):
                    a = ACS + 32 * ct + 16 * rt
                    c = "0" if (hh == 0 and q == 0) else ar(a, 16)
                    p(f"v_mfma_f32_32x32x16_bf16 {ar(a,16)}, {ar(wf+8*q+4*ct,4)}, {vr(OB+8*rt+4*q,4)}, {c}")
    stamp(p)
    def dump(f, acc, base):
        for ct in range(2):
            for a in range(4):
                p(f"v_xor_b32 {vr(TM+(a&1))}, {(8*ct+2*a)*16}, {vr(V_RW)}")
                for rt in range(2):
                    p(f"ds_write_b128 {vr(TM+(a&1))}, {f(acc+32*ct+16*rt+4*a,4)} offset:{base+rt*8192}")
    unit(25)
    dump(ar, ACS, 0)
    unit(26); unit(27)
    stamp(p)
    dump(vr, ACC, 16384)
    p("s_waitcnt lgkmcnt(0)")
    p("s_barrier")
    stamp(p)
    R, B, X, E = 128, 32, 40, 48
    p(f"v_mov_b32 {vr(TM+3)}, {vr(V_RR)}")
    p(f"v_mov_b32 v20, {vr(V_XO)}")
    p(f"v_xor_b32 {vr(TM)}, 16, {vr(V_RR)}")
    p(f"v_add_u32 {vr(TM+1)}, {2*WREG}, {vr(V_RR)}")
    p(f"v_add_u32 {vr(TM+2)}, {2*WREG}, {vr(TM)}")
    tg = {}
    for ps in range(2):
        for arr in range(2):
            for sw in range(4):
                for c in range(2):
                    a = (TM + 3, TM, TM + 1, TM + 2)[c + 2 * (sw >> 1)]
                    p(f"ds_read_b128 {vr(R+64*ps+32*arr+8*sw+4*c,4)}, {vr(a)} offset:{(sw&1)*WREG + arr*16384 + ps*2048}")
            tg[ps, arr] = p.lgtag()
    p.wait_vm(cx.xtag)
    for i in range(4):
        p(f"v_lshlrev_b32 {vr(B+2*i)}, 16, {vr(B2+i)}")
        p(f"v_and_b32 {vr(B+2*i+1)}, 0xffff0000, {vr(B2+i)}")
    p(f"s_mov_b32 {sr(S_T1)}, {hex(LOG2E | 0x80000000)}")
    p(f"s_mov_b32 {sr(S_MEV)}, 1.0")
    p(f"s_mov_b32 {sr(S_MEV+1)}, 1.0")
    for ps in range(2):
        for arr in range(2):
            p.wait_lg(tg[ps, arr])
            b = R + 64 * ps + 32 * arr
            for i in range(4):
                p(f"v_pk_add_f32 {vr(b+2*i,2)}, {vr(b+2*i,2)}, {vr(b+8+2*i,2)}")
                p(f"v_pk_add_f32 {vr(b+16+2*i,2)}, {vr(b+16+2*i,2)}, {vr(b+24+2*i,2)}")
            for i in range(4):
                p(f"v_pk_add_f32 {vr(b+2*i,2)}, {vr(b+2*i,2)}, {vr(b+16+2*i,2)}")
        s_ = R + 64 * ps; o_ = s_ + 32
        for i in range(4):
            p(f"v_pk_fma_f32 {vr(o_+2*i,2)}, {vr(o_+2*i,2)}, {vr(108+2*ps,2)}, {vr(B+2*i,2)} op_sel_hi:[1,0,1]")
        for i in range(8):
            p(f"v_mul_f32 {vr(E+i)}, {sr(S_T1)}, {vr(o_+i)}")
        for i in range(8):
            p(f"v_exp_f32 {vr(E+i)}, {vr(E+i)}")
        for i in range(4):
            p(f"v_lshlrev_b32 {vr(X+2*i)}, 16, {vr(XD+4*ps+i)}")
            p(f"v_and_b32 {vr(X+2*i+1)}, 0xffff0000, {vr(XD+4*ps+i)}")
        for i in range(4):
            p(f"v_pk_add_f32 {vr(E+2*i,2)}, {vr(E+2*i,2)}, {sr(S_MEV,2)}")
        for i in range(8):
            p(f"v_rcp_f32 {vr(E+i)}, {vr(E+i)}")
        for i in range(4):
            p(f"v_pk_mul_f32 {vr(o_+2*i,2)}, {vr(o_+2*i,2)}, {vr(s_+2*i,2)}")
        for i in range(4):
            p(f"v_pk_fma_f32 {vr(X+2*i,2)}, {vr(o_+2*i,2)}, {vr(E+2*i,2)}, {vr(X+2*i,2)}")
        for i in range(4):
            p(f"v_cvt_pk_bf16_f32 {vr(s_+i)}, {vr(X+2*i)}, {vr(X+2*i+1)}")
        so = sr(S_XO) if ps == 0 else sr(S_ST)
        p(f"buffer_store_dwordx4 {vr(s_,4)}, v20, {sr(S_OUT,4)}, {so} offen")
    stamp_out(p)

def gen_all(p):
    cx = Ctx(); cx.pre_bar = {}; cx.w2t = {}
    ea = prologue(p, cx)
    pass0(p, cx, ea)
    stamp(p)
    pass1(p, cx)
    ea1, rta1 = dict(cx.exit_after), dict(cx.rt_after)
    p(f"s_cmp_eq_u32 {sr(S_CS)}, 7\ns_cbranch_scc1 L_IDLE")
    stamp(p)
    pass2(p, cx)
    phase2(p, cx)
    p("L_END:\ns_endpgm")
    idle_path(p, cx, ea1, rta1)

if __name__ == "__main__":
    out = sys.argv[1]
    for a in sys.argv[2:]:
        k, v = a.split("=")
        OPT[k] = v if not v.lstrip("-").isdigit() else int(v)
    build([(NAME + "_kernel", gen_all, 256, 256, 163840, 512, 256)], out)
```

```python
import sys
sys.path.insert(0, "gen")
from asmlib import *
import gen as G1
from gen import vr, ar, sr, NAME, build, LOG2E

WS_H, WS_PQ, WS_KVP, WS_KVF, WS_FLG, WS_SIZE = 0, 0x700000, 0x8C0000, 0x9C0000, 0x9D0000, 0xA00000
WS_RS = 0x9E0000
FL_ROW, FL_KF1, FL_KF2 = 0, 64 * 128, 128 * 128
WREG = 40960
OPT = dict(dbg=False, mapping="C", dstyle="dot", spin=200000)

S_X, S_W, S_WS, S_B, S_W2, S_OUT, S_B2, S_DBG = 4, 8, 12, 16, 20, 24, 28, 32
S_WQKV, S_W1, S_WO = 36, 38, 40
S_NB, S_NREC, S_NCOL, S_NSTR, S_NBREC, S_NBOFF, S_NST2 = 42, 44, 45, 46, 47, 48, 49
S_C, S_M = 50, 57
S_WV, S_WBLK, S_R, S_J, S_RB, S_CS = 64, 65, 66, 67, 68, 69
S_ST, S_T0, S_T1, S_T2, S_EPS, S_LN2 = 74, 75, 76, 77, 78, 79
S_MEV, S_MOD = 80, 82
S_PROG, S_NXT, S_CUR, S_SPIN = 84, 85, 86, 87
S_TAB = 88
S_K1, S_K2 = 100, 101
S_ROWM = 3
V_L, V_AW = 1, 2
V_RS, V_RSL, V_L16, V_KFO = 6, 7, 8, 9
V_WA, V_WB = 10, 11
V_B0, V_B1, V_XA = 12, 13, 16
V_NB = 14
A_P, A_CF, A_CS = 160, 164, 172
V_CA = 128
XCH = 19 * 1024
V_ROW, V_TP, V_BO = 20, 21, 22
V_W2 = 23
V_A0 = 27
V_FO, V_FT, V_STAMP = 29, 30, 31
V_ACC, V_SV, V_TMP, V_X = 32, 64, 96, 144
A_RING = 224
SCR = 16 * 1024

def pos(u):
    return u if u % 2 == 0 else (u + 2 if u < 13 else 1)

def stamp(p, real=False):
    if not OPT["dbg"]: return
    p("s_memrealtime s[70:71]" if real else "s_memtime s[70:71]")
    p.lg += 0
    p("s_waitcnt lgkmcnt(0)")
    p("s_mov_b64 exec, s[72:73]")
    p(f"v_mov_b32 v{V_STAMP}, s70")
    p("s_mov_b64 exec, -1")
    p("s_lshl_b64 s[72:73], s[72:73], 1")
def stamp_init(p):
    if not OPT["dbg"]: return
    p("s_mov_b64 s[72:73], 1")
    p(f"v_mov_b32 v{V_STAMP}, 0")
    stamp(p, True); stamp(p)
def stamp_out(p):
    if not OPT["dbg"]: return
    stamp(p); stamp(p, True)
    p(f"""
    s_lshl_b32 s70, s2, 2
    s_add_u32 s70, s70, {sr(S_WV)}
    s_lshl_b32 s70, s70, 8
    s_add_u32 s70, s70, 0xA00000
    v_lshlrev_b32 v0, 2, {vr(V_L)}
    s_mov_b32 {sr(S_WS+2)}, 0x1000000
    buffer_store_dword v{V_STAMP}, v0, {sr(S_WS,4)}, s70 offen
    """)

class Gaps:
    def __init__(self, n, cap=4):
        self.g = [[] for _ in range(n)]
        self.cost = [0] * n
        self.cap = cap
    def put(self, gi, item, cost=None):
        c = cost if cost is not None else (item.count("\n") + 1 if isinstance(item, str) else 1)
        self.g[gi].append(item); self.cost[gi] += c
    def spread(self, items, start, cap=None, end=None):
        cap = cap or self.cap
        gi = start
        for it in items:
            c = it.count("\n") + 1 if isinstance(it, str) else getattr(it, "cost", 1)
            while self.cost[gi] + c > cap and self.cost[gi] > 0 and gi + 1 < (end or len(self.g)):
                gi += 1
            self.put(gi, it, c)
        return gi
    def emit(self, p, gi):
        for it in self.g[gi]:
            if isinstance(it, str): p(it)
            else: it(p)

def F(fn, cost=1):
    fn.cost = cost
    return fn

def ring_reads(p, e, half):
    st = A_RING + 8 * (e % 4)
    ee = e % 28
    off = pos(ee >> 1) * 1024
    a = V_AW + half + 2 * (ee & 1)
    p(f"ds_read_b64_tr_b16 {ar(st+4*half,2)}, {vr(a)} offset:{off}")
    p(f"ds_read_b64_tr_b16 {ar(st+4*half+2,2)}, {vr(a)} offset:{off+512}")

class Ctx:
    pass

def spin_check(p, lab, reload, cmp_lines):
    p(f"s_mov_b32 {sr(S_SPIN)}, {OPT['spin']}")
    p(f"{lab}_c:")
    p(cmp_lines)
    p(f"s_cbranch_vccz {lab}_ok")
    vm0 = p.vm
    p(f"s_sub_u32 {sr(S_SPIN)}, {sr(S_SPIN)}, 1")
    p(f"s_cbranch_scc1 {lab}_ok")
    p(reload)
    p("s_waitcnt vmcnt(0)")
    p(f"s_branch {lab}_c")
    p.vm = vm0
    p(f"{lab}_ok:")

def switch_items():
    now = f"""s_mov_b64 {sr(S_W,2)}, {sr(S_NB,2)}
    s_mov_b32 {sr(S_W+2)}, {sr(S_NREC)}
    s_mul_i32 {sr(S_C)}, {sr(S_M)}, {sr(S_NST2)}
    v_mad_u32_u24 {vr(V_WA)}, {vr(V_ROW)}, {sr(S_NSTR)}, {vr(V_TP)}
    v_add_u32 {vr(V_WA)}, {sr(S_NCOL)}, {vr(V_WA)}"""
    later = [f"""s_lshr_b32 {sr(S_T2)}, {sr(S_NST2)}, 1
    s_sub_u32 {sr(S_T2)}, {sr(S_T2)}, 1024
    v_add_u32 {vr(V_WB)}, {sr(S_T2)}, {vr(V_WA)}"""]
    for c in range(1, 7):
        later.append(f"s_mul_i32 {sr(S_C+c)}, {sr(S_M+c)}, {sr(S_NST2)}")
    return now, later

def cs_items(cx, name, g):
    tg = {}
    for u in range(14):
        v = u >> 1
        g0 = (0, 5)[v] + (u & 1) if v < 2 else 2 * (4 * v - 3) + (u & 1)
        f = A_CF + 4 * (u & 1)
        def rd(p, u=u, f=f):
            for ct in range(2):
                p(f"ds_read_b64_tr_b16 {ar(f+2*ct,2)}, {vr(V_A0+ct)} offset:{pos(u)*1024}")
            tg[u] = p.lgtag()
        def mm(p, u=u, f=f):
            p.wait_lg(tg[u])
            p(f"v_mfma_f32_16x16x32_bf16 {ar(A_CS,4)}, {ar(A_P,4)}, {ar(f,4)}, {ar(A_CS,4) if u else 0}")
        g.put(g0, F(rd, 2), 2)
        g.put(g0 + 3, F(mm, 2), 2)
    c = V_CA
    g.put(47, f"v_lshl_add_u32 {vr(c+3)}, {sr(S_WV)}, 2, {vr(V_L16)}")
    g.put(48, f"""v_accvgpr_read_b32 {vr(c)}, {ar(A_CS)}
    v_cvt_pk_bf16_f32 {vr(c+1)}, {vr(c)}, {vr(c)}
    v_and_b32 {vr(c+1)}, 0xffff0000, {vr(c+1)}
    v_sub_f32 {vr(c)}, {vr(c)}, {vr(c+1)}
    v_cvt_pk_bf16_f32 {vr(c)}, {vr(c+1)}, {vr(c)}""")
    def wr(p):
        p(f"ds_write_b32 {vr(c+3)}, {vr(c)} offset:{XCH}")
        cx.xwt = p.lgtag()
        p(f"v_lshlrev_b32 {vr(c+2)}, 3, {vr(V_BO)}")
    g.put(49, F(wr, 2), 2)
    def rd2(p):
        p(f"ds_read_b128 {vr(c+4,4)}, {vr(c+2)} offset:{XCH+512}")
        p(f"ds_read_b128 {vr(c,4)}, {vr(c+2)} offset:{XCH}")
        tg["a"] = p.lgtag()
    g.put(50, F(rd2, 2), 2)
    def cm(p):
        p(f"v_cmp_gt_u32 vcc, 32, {vr(V_L)}")
        p.wait_lg(tg["a"])
        p(f"v_cndmask_b32 {vr(c)}, {vr(V_B0)}, {vr(c)}, vcc\nv_cndmask_b32 {vr(c+4)}, {vr(V_B1)}, {vr(c+4)}, vcc")
    g.put(53, F(cm, 4), 4)
    g.pre = {}
    for h in range(2):
        g.put(54 + h, f"v_mfma_f32_32x32x16_bf16 {vr(V_ACC+16*h,16)}, {vr(c+4*h,4)}, {vr(V_XA,4)}, {vr(V_ACC+16*h,16)}")

def gen_pass(p, cx, name, gaps, head, entry_after, last=False):
    vm_entry = p.vm
    cx.ea = lambda u: min(63, entry_after[u] + (p.vm - vm_entry))
    head(p)
    nxt = {}
    def wait_piece(u, cur=True):
        if cur and u not in cx.wt_in:
            n = entry_after[u] + (p.vm - vm_entry)
            p(f"s_waitcnt vmcnt({min(n,63)})")
        else:
            p.wait_vm(cx.wt_in[u] if cur else nxt[u])
    cx.wt_in = {}
    rt = cx.rt
    now, later = switch_items()
    cs_items(cx, name, gaps)
    for e in range(28):
        st = A_RING + 8 * (e % 4)
        p.wait_lg(rt[e])
        p(f"v_mfma_f32_32x32x16_bf16 {vr(V_ACC,16)}, {ar(st,4)}, {vr(V_X+4*e,4)}, {vr(V_ACC,16) if e else 0}")
        if e % 4 == 1:
            v = (e + 3) // 4
            if v < 7: wait_piece(2 * v + 1)
            elif not last: wait_piece(1, cur=False)
            if cx.pre_bar.get((name, v)): cx.pre_bar[(name, v)](p)
            if v == 7: p.wait_lg(cx.xwt)
            p("s_barrier")
        if not (last and e + 3 >= 28): ring_reads(p, e + 3, 0)
        gaps.emit(p, 2 * e)
        p(f"v_mfma_f32_32x32x16_bf16 {vr(V_ACC+16,16)}, {ar(st+4,4)}, {vr(V_X+4*e,4)}, {vr(V_ACC+16,16) if e else 0}")
        if not (last and e + 3 >= 28): ring_reads(p, e + 3, 1)
        rt[e + 3] = p.lgtag()
        if e % 4 == 1:
            v = (e + 3) // 4
            uo = (2 * v - 3) % 14
            p(f"s_add_u32 m0, {sr(S_WBLK)}, {pos(2*v-2)*1024}")
            p(f"buffer_load_dwordx4 {vr(V_WB)}, {sr(S_W,4)}, {sr(S_C+(uo>>1))} offen offset:1024 lds")
            if v == 1: cx.wt_in[13] = p.vmtag()
            else: nxt[uo] = p.vmtag()
            if v == 1: p(now)
        if e % 4 == 2:
            v = (e + 2) // 4
            p(f"s_add_u32 m0, {sr(S_WBLK)}, {pos(2*v-2)*1024}")
            p(f"buffer_load_dwordx4 {vr(V_WA)}, {sr(S_W,4)}, {sr(S_C+v-1)} offen lds")
            nxt[2 * v - 2] = p.vmtag()
            if v == 1:
                p(later[0]); p(later[1])
            elif v < 7:
                p(later[v])
        if e == 3 and not last:
            p(f"s_mov_b32 {sr(S_B+2)}, {sr(S_NBREC)}")
            p(f"buffer_load_ushort {vr(V_NB)}, {vr(V_BO)}, {sr(S_B,4)}, {sr(S_NBOFF)} offen")
            p(f"buffer_load_ushort {vr(V_NB+1)}, {vr(V_BO)}, {sr(S_B,4)}, {sr(S_NBOFF)} offen offset:64")
            cx.btag = p.vmtag()
        gaps.emit(p, 2 * e + 1)
    cx.rt = {0: rt[28], 1: rt[29], 2: rt[30]}
    cx.rt_after = {k: p.lg - rt[28 + k] for k in range(3)}
    cx.exit_after = {u: p.vm - t for u, t in nxt.items()}
    if not last:
        p.wait_vm(cx.btag)
        p(f"v_mov_b32 {vr(V_B0)}, {vr(V_NB)}\nv_mov_b32 {vr(V_B1)}, {vr(V_NB+1)}")
    cx.nxt = nxt

def m0_guard(items):
    return items

def w2_dma_items(cx, pr, slot):
    so = sr(S_T1)
    if pr < 12: a = f"s_mul_i32 {so}, {sr(S_TAB+pr)}, 14"
    else: a = f"s_mov_b32 {so}, {pr*114688}"
    its = []
    for k in range(4):
        def f(p, k=k):
            if k == 0: p(a)
            p(f"s_add_u32 m0, {sr(S_WBLK)}, {(20+4*slot)*1024}")
            p(f"buffer_load_dwordx4 {vr(V_W2+k)}, {sr(S_W2,4)}, {so} offen offset:{k*1024} lds")
            cx.w2t[pr] = p.vmtag()
        its.append(F(f, 3 if k == 0 else 2))
    return its
def w2_dma_block(p, cx, pr, slot):
    so = sr(S_T1)
    if pr < 12: p(f"s_mul_i32 {so}, {sr(S_TAB+pr)}, 14")
    else: p(f"s_mov_b32 {so}, {pr*114688}")
    p(f"s_add_u32 m0, {sr(S_WBLK)}, {(20+4*slot)*1024}")
    for k in range(4):
        p(f"buffer_load_dwordx4 {vr(V_W2+k)}, {sr(S_W2,4)}, {so} offen offset:{k*1024} lds")
    cx.w2t[pr] = p.vmtag()
def w2_read_items(cx, pr, slot, after=None):
    its = []
    def w(p):
        if after is not None: p(f"s_waitcnt vmcnt({min(63, after(p))})")
        else: p.wait_vm(cx.w2t[pr])
    its.append(F(w, 1))
    for un in range(2):
        for ct in range(2):
            u = 2 * pr + un
            its.append("\n".join(f"ds_read_b64_tr_b16 {ar(8*u+4*ct+2*t,2)}, {vr(V_A0+ct)} offset:{(20+4*slot+2*un+t)*1024}" for t in range(2)))
    return its

def d_items(s):
    its = []
    for q in range(4):
        b = V_X + 16 * s + 4 * q
        t = 108 + 8 * (q & 1)
        if OPT["dstyle"] == "dot":
            for k in range(4):
                its.append(f"v_dot2_f32_bf16 {vr(t+2*k)}, {vr(b+k)}, {sr(S_K1)}, v104\nv_dot2_f32_bf16 {vr(t+2*k+1)}, {vr(b+k)}, {sr(S_K2)}, v104")
        else:
            for k in range(4):
                its.append(f"v_lshlrev_b32 {vr(t+2*k)}, 16, {vr(b+k)}\nv_and_b32 {vr(t+2*k+1)}, {sr(S_K2)}, {vr(b+k)}")
            for k in range(4):
                its.append(f"v_add_f32 {vr(t+2*k)}, v104, {vr(t+2*k)}\nv_add_f32 {vr(t+2*k+1)}, v104, {vr(t+2*k+1)}")
        for k in range(0, 4, 2):
            its.append(f"v_cvt_pk_bf16_f32 {vr(b+k)}, {vr(t+2*k)}, {vr(t+2*k+1)}\nv_cvt_pk_bf16_f32 {vr(b+k+1)}, {vr(t+2*k+2)}, {vr(t+2*k+3)}")
    return its

def save_phi(i): return f"v_fma_f32 {vr(V_SV+i)}, {vr(V_ACC+i)}, {vr(V_RSL)}, {sr(S_EPS)}"
def save_mul(i): return f"v_mul_f32 {vr(V_SV+i)}, {vr(V_RS)}, {vr(V_ACC+i)}"
def save_max(i): return f"v_mul_f32_e64 {vr(V_SV+i)}, {vr(V_ACC+i)}, |{vr(V_ACC+i)}|"

def phi_items(lo, hi, T):
    its = []
    for i in range(lo, hi, 2):
        t = T + 2 * ((i >> 1) & 1)
        its.append(f"v_exp_f32 {vr(t)}, {vr(V_SV+i)} clamp\nv_exp_f32 {vr(t+1)}, {vr(V_SV+i+1)} clamp")
        its.append(f"v_max_f32 {vr(V_SV+i)}, {sr(S_EPS)}, {vr(V_SV+i)}\nv_max_f32 {vr(V_SV+i+1)}, {sr(S_EPS)}, {vr(V_SV+i+1)}")
        its.append(f"v_fma_f32 {vr(t)}, {vr(V_SV+i)}, {sr(S_LN2)}, {vr(t)}\nv_fma_f32 {vr(t+1)}, {vr(V_SV+i+1)}, {sr(S_LN2)}, {vr(t+1)}")
        its.append(f"v_cvt_pk_bf16_f32 {vr(V_SV+i//2)}, {vr(t)}, {vr(t+1)}")
    return its

def h_items(cx, store=True):
    its = []
    for q in range(4):
        for i in range(8 * q, 8 * q + 8, 4):
            its.append(f"v_cvt_pk_bf16_f32 {vr(V_SV+i//2)}, {vr(V_SV+i)}, {vr(V_SV+i+1)}\nv_cvt_pk_bf16_f32 {vr(V_SV+i//2+1)}, {vr(V_SV+i+2)}, {vr(V_SV+i+3)}")
            its.append(f"v_pk_max_i16 {vr(V_SV+i//2)}, {vr(V_SV+i//2)}, 0\nv_pk_max_i16 {vr(V_SV+i//2+1)}, {vr(V_SV+i//2+1)}, 0")
        its.append(st_item(cx, q))
    return its
def st_item(cx, q):
    def f(p):
        p(f"buffer_store_dwordx4 {vr(V_SV+4*q,4)}, {vr(V_L16)}, {sr(S_WS,4)}, {sr(S_ST)} offen offset:{q*1024} sc1")
        cx.sttag = p.vmtag()
    return F(f, 1)
def q_items(cx, T):
    its = []
    for q in range(4):
        its += phi_items(8 * q, 8 * q + 8, T)
        its.append(f"v_permlane32_swap_b32 {vr(V_SV+4*q)}, {vr(V_SV+4*q+2)}\nv_permlane32_swap_b32 {vr(V_SV+4*q+1)}, {vr(V_SV+4*q+3)}")
        its.append(st_item(cx, q))
    return its

def st_addr_h(g):
    return f"""s_lshl_b32 {sr(S_ST)}, {sr(S_R)}, 2
    s_add_u32 {sr(S_ST)}, {sr(S_ST)}, {sr(S_WV)}
    s_mul_i32 {sr(S_ST)}, {sr(S_ST)}, {112*1024}
    s_lshl_b32 {sr(S_T0)}, {g}, 12
    s_add_u32 {sr(S_ST)}, {sr(S_ST)}, {sr(S_T0)}"""

def next_h(g):
    return f"""s_mov_b64 {sr(S_NB,2)}, {sr(S_W1,2)}
    s_cmp_lt_u32 {g}, 28
    s_cselect_b32 {sr(S_NREC)}, 1605632, 0
    s_cselect_b32 {sr(S_NBREC)}, 3584, 0
    s_lshl_b32 {sr(S_NCOL)}, {g}, 7
    s_mov_b32 {sr(S_NBOFF)}, {sr(S_NCOL)}
    s_movk_i32 {sr(S_NSTR)}, 3584
    s_mov_b32 {sr(S_NST2)}, {64*3584}"""

def flag_post(val_s, voff):
    return f"v_mov_b32 {vr(V_FT)}, {val_s}\nbuffer_store_dword {vr(V_FT)}, {voff}, {sr(S_WS,4)}, 0 offen sc1"
```

```python
import sys
sys.path.insert(0, "gen")
from g2 import *
import g2
OPT.update(sqm=0, x2=0, d04=(26, 30, 34, 42, 50), fl1=10, kf1=12, pbi=8, pbc=11, n0=6, capA=4, capB=6, rchk=24, pki=16, pkc=19, radd=40, radc=10)
S_FO, S_KFO = 0, 1
V_PK, V_PF = 9, 29
V_H, V_RW, V_RR, V_XO, V_PA = 136, 140, 141, 142, 143
S_PRV = S_NXT
def post(val, soff):
    return f"v_mov_b32 {vr(V_FT)}, {val}\nbuffer_store_dword {vr(V_FT)}, off, {sr(S_WS,4)}, {soff} sc1"
def wpos(i): return 16 if i == 13 else pos(i)

def prologue(p, cx):
    p("s_cmp_ge_u32 s2, 256\ns_cbranch_scc1 L_END")
    stamp_init(p)
    for s, o in ((S_X, 0), (S_WQKV, 8), (S_WS, 80), (S_W2, 48), (S_WO, 16), (S_W1, 32), (S_B, 40), (S_B2, 56), (S_OUT, 64), (S_DBG, 72)):
        p(f"s_load_dwordx2 {sr(s,2)}, s[0:1], {o}")
    p(f"""
    v_and_b32 {vr(V_L)}, 63, v0
    v_lshrrev_b32 v108, 6, v0
    v_lshrrev_b32 v109, 3, {vr(V_L)}
    v_readfirstlane_b32 {sr(S_WV)}, v108
    v_and_b32 v110, 7, {vr(V_L)}
    v_lshrrev_b32 v111, 4, {vr(V_L)}
    v_xor_b32 v112, v110, v111
    v_lshlrev_b32 v112, 4, v112
    v_mov_b32 v113, 896
    v_mad_u32_u24 v96, v109, v113, v112
    v_xor_b32 v97, 64, v96
    v_add_u32 v98, {14336-2048}, v96
    v_add_u32 v99, {21504-3072}, v97
    v_add_u32 v97, {7168-1024}, v97
    s_and_b32 {sr(S_T0)}, s2, 7
    s_lshr_b32 {sr(S_T1)}, s2, 3
    s_and_b32 {sr(S_T2)}, {sr(S_T1)}, 3
    s_lshr_b32 {sr(S_CS)}, {sr(S_T1)}, 2
    s_lshl_b32 {sr(S_RB)}, {sr(S_T0)}, 2
    s_add_u32 {sr(S_RB)}, {sr(S_RB)}, {sr(S_T2)}
    s_lshr_b32 {sr(S_R)}, {sr(S_T0)}, 1
    s_lshl_b32 {sr(S_R)}, {sr(S_R)}, 2
    s_add_u32 {sr(S_R)}, {sr(S_R)}, {sr(S_T2)}
    s_and_b32 {sr(S_J)}, {sr(S_T0)}, 1
    s_lshl_b32 {sr(S_J)}, {sr(S_J)}, 3
    s_add_u32 {sr(S_J)}, {sr(S_J)}, {sr(S_CS)}
    s_lshl_b32 {sr(S_T1)}, {sr(S_T2)}, 1
    s_add_u32 {sr(S_T1)}, {sr(S_T1)}, {sr(S_CS)}
    s_sub_u32 {sr(S_M)}, {sr(S_T1)}, 7
    s_cselect_b32 {sr(S_M)}, {sr(S_T1)}, {sr(S_M)}
    s_mul_i32 {sr(S_WBLK)}, {sr(S_WV)}, {WREG}
    s_lshl_b32 {sr(S_CUR)}, {sr(S_R)}, 2
    s_add_u32 {sr(S_CUR)}, {sr(S_CUR)}, {sr(S_WV)}
    s_mul_i32 {sr(S_ST)}, {sr(S_CUR)}, 28672
    s_mov_b32 {sr(S_X+2)}, 1835008
    s_mov_b32 {sr(S_X+3)}, 0x00020000
    s_mov_b32 {sr(S_WS+2)}, {WS_SIZE}
    s_mov_b32 {sr(S_WS+3)}, 0x00020000
    """)
    for s in range(1, 7):
        p(f"s_add_u32 {sr(S_M+s)}, {sr(S_M+s-1)}, 1\ns_cmp_eq_u32 {sr(S_M+s)}, 7\ns_cselect_b32 {sr(S_M+s)}, 0, {sr(S_M+s)}")
    p(f"""
    v_lshl_add_u32 {vr(V_ROW)}, {sr(S_WV)}, 3, v109
    v_lshrrev_b32 v112, 2, v110
    v_and_b32 v113, 1, v111
    v_xor_b32 v112, v112, v113
    v_and_b32 v113, 3, v110
    v_lshlrev_b32 v113, 4, v113
    v_lshl_add_u32 {vr(V_TP)}, v112, 6, v113
    s_movk_i32 {sr(S_T0)}, 2688
    s_movk_i32 {sr(S_K1)}, 896
    v_mad_u32_u24 {vr(V_WA)}, {vr(V_ROW)}, {sr(S_T0)}, v113
    v_mad_u32_u24 {vr(V_WA)}, v112, {sr(S_K1)}, {vr(V_WA)}
    s_mov_b32 {sr(S_W+2)}, 1204224
    s_mov_b32 {sr(S_W+3)}, 0x00020000
    s_mul_i32 {sr(S_T0)}, {sr(S_J)}, 56
    s_and_b32 {sr(S_K2)}, {sr(S_J)}, 1
    s_lshl_b32 {sr(S_K2)}, {sr(S_K2)}, 3
    s_sub_u32 {sr(S_T0)}, {sr(S_T0)}, {sr(S_K2)}
    s_add_u32 {sr(S_T0)}, {sr(S_T0)}, 896
    v_add_u32 {vr(V_WA)}, {sr(S_T0)}, {vr(V_WA)}
    v_add_u32 {vr(V_WB)}, {32*2688-1024}, {vr(V_WA)}
    """)
    for s in range(7):
        p(f"s_mul_i32 {sr(S_C+s)}, {sr(S_M+s)}, {64*2688}")
    p(f"""
    v_mov_b32 v120, {vr(V_WA)}
    v_mov_b32 v121, {vr(V_WB)}
    s_mov_b32 {sr(S_MEV+2)}, 1204224
    s_mov_b32 {sr(S_MEV+3)}, 0x00020000
    """)
    p("s_waitcnt lgkmcnt(0)")
    stamp(p)
    p(f"s_mov_b64 {sr(S_W,2)}, {sr(S_WQKV,2)}\ns_mov_b64 {sr(S_MEV,2)}, {sr(S_WQKV,2)}")
    vm0 = p.vm
    p(f"""
    s_cmp_lg_u32 s2, 0
    s_cbranch_scc1 L_NZ
    v_lshrrev_b32 v112, 2, {vr(V_L)}
    v_and_b32 v113, 3, {vr(V_L)}
    v_lshlrev_b32 v112, 7, v112
    v_lshl_add_u32 v112, v113, 4, v112
    v_mov_b32 v116, 0
    v_mov_b32 v117, 0
    v_mov_b32 v118, 0
    v_mov_b32 v119, 0
    s_mul_i32 {sr(S_T0)}, {sr(S_WV)}, 6144
    s_add_u32 {sr(S_T0)}, {sr(S_T0)}, {WS_FLG}
    buffer_store_dwordx4 v[116:119], v112, {sr(S_WS,4)}, {sr(S_T0)} offen sc1
    buffer_store_dwordx4 v[116:119], v112, {sr(S_WS,4)}, {sr(S_T0)} offen offset:2048 sc1
    s_add_u32 {sr(S_T0)}, {sr(S_T0)}, 4096
    buffer_store_dwordx4 v[116:119], v112, {sr(S_WS,4)}, {sr(S_T0)} offen sc1
    L_NZ:
    """)
    p.vm = vm0
    xt = cx.xt = {}
    wt = cx.wt_in = {}
    def xload(p, s):
        p(f"s_lshl_b32 {sr(S_T0)}, {sr(S_M+s)}, 7\ns_add_u32 {sr(S_T0)}, {sr(S_T0)}, {sr(S_ST)}\ns_add_u32 m0, {sr(S_WBLK)}, {(12+4*s)*1024}")
        for q in range(4):
            p(f"buffer_load_dwordx4 {vr(96+q)}, {sr(S_X,4)}, {sr(S_T0)} offen offset:{1024*q} lds")
        xt[s] = p.vmtag()
    def wload(p, u):
        p(f"s_add_u32 m0, {sr(S_WBLK)}, {(pos(u)-(u&1))*1024}")
        p(f"buffer_load_dwordx4 v{120+(u&1)}, {sr(S_MEV,4)}, {sr(S_C+(u>>1))} offen{' offset:1024' if u & 1 else ''} lds")
        cx.wt_in[u] = p.vmtag()
        if u == 12: cx.wt_in[13] = p.vmtag()
    cx.xload, cx.wload = xload, wload
    for s in range(2):
        xload(p, s); wload(p, 2 * s); wload(p, 2 * s + 1)
    p(f"s_lshl_b32 {sr(S_T1)}, {sr(S_T1)}, 13")
    for q in range(8):
        p(f"s_add_u32 {sr(S_TAB+q)}, {sr(S_T1)}, {q*8192}\ns_and_b32 {sr(S_TAB+q)}, {sr(S_TAB+q)}, 0xffff")
    p(f"""
    s_add_u32 {sr(S_T1)}, {sr(S_T2)}, {sr(S_CS)}
    s_mul_i32 {sr(S_T0)}, {sr(S_T1)}, 11
    s_lshr_b32 {sr(S_T0)}, {sr(S_T0)}, 5
    s_mul_i32 {sr(S_T0)}, {sr(S_T0)}, 3
    s_sub_u32 {sr(S_T1)}, {sr(S_T1)}, {sr(S_T0)}
    s_lshl_b32 {sr(S_T1)}, {sr(S_T1)}, 13
    s_add_u32 {sr(S_TAB+8)}, {sr(S_T1)}, 0x10000
    s_mov_b32 {sr(S_TAB+11)}, {11*8192}
    """)
    for q in (9, 10):
        p(f"s_add_u32 {sr(S_TAB+q)}, {sr(S_TAB+q-1)}, 8192\ns_cmp_eq_u32 {sr(S_TAB+q)}, {sr(S_TAB+11)}\ns_cselect_b32 {sr(S_TAB+q)}, 0x10000, {sr(S_TAB+q)}")
    p(f"""
    s_mov_b32 {sr(S_W2+2)}, 1605632
    s_mov_b32 {sr(S_W2+3)}, 0x00020000
    s_mov_b32 {sr(S_B+3)}, 0x00020000
    s_mov_b32 {sr(S_OUT+2)}, 1835008
    s_mov_b32 {sr(S_OUT+3)}, 0x00020000
    s_mov_b32 {sr(S_B2+2)}, 896
    s_mov_b32 {sr(S_B2+3)}, 0x00020000
    s_mov_b32 {sr(S_DBG+2)}, 256
    s_mov_b32 {sr(S_DBG+3)}, 0x00020000
    s_lshl_b32 {sr(S_FO)}, {sr(S_CUR)}, 7
    s_lshl_b32 {sr(S_T0)}, {sr(S_J)}, 2
    s_add_u32 {sr(S_FO)}, {sr(S_FO)}, {sr(S_T0)}
    s_add_u32 {sr(S_FO)}, {sr(S_FO)}, {WS_FLG+FL_ROW}
    s_add_u32 {sr(S_KFO)}, {sr(S_T0)}, {sr(S_WV)}
    s_lshl_b32 {sr(S_KFO)}, {sr(S_KFO)}, 7
    s_lshl_b32 {sr(S_T0)}, {sr(S_R)}, 2
    s_add_u32 {sr(S_KFO)}, {sr(S_KFO)}, {sr(S_T0)}
    s_add_u32 {sr(S_KFO)}, {sr(S_KFO)}, {WS_FLG+FL_KF1}
    s_mul_i32 {sr(S_T0)}, {sr(S_WV)}, 14336
    s_lshl_b32 {sr(S_T1)}, {sr(S_CS)}, 7
    s_add_u32 {sr(S_T0)}, {sr(S_T0)}, {sr(S_T1)}
    v_mad_u32_u24 {vr(V_W2)}, v109, {sr(S_K1)}, {vr(V_TP)}
    v_add_u32 {vr(V_W2)}, {sr(S_T0)}, {vr(V_W2)}
    v_add_u32 {vr(V_W2+1)}, {7168-1024}, {vr(V_W2)}
    v_add_u32 {vr(V_W2+2)}, {57344-2048}, {vr(V_W2)}
    v_add_u32 {vr(V_W2+3)}, {64512-3072}, {vr(V_W2)}
    v_lshrrev_b32 v112, 5, {vr(V_L)}
    v_bfe_u32 v113, {vr(V_L)}, 2, 2
    v_lshlrev_b32 v114, 7, v113
    v_bfe_u32 v115, {vr(V_L)}, 3, 1
    v_lshl_add_u32 v114, v115, 6, v114
    v_bfe_u32 v115, {vr(V_L)}, 4, 1
    v_lshl_add_u32 v114, v115, 5, v114
    v_and_b32 v115, 3, {vr(V_L)}
    v_lshl_add_u32 v114, v115, 3, v114
    v_mul_u32_u24 {vr(V_AW)}, {WREG}, v112
    v_add_u32 {vr(V_AW)}, {vr(V_AW)}, v114
    v_xor_b32 {vr(V_AW+1)}, 64, {vr(V_AW)}
    v_add_u32 {vr(V_AW+2)}, {2*WREG}, {vr(V_AW)}
    v_add_u32 {vr(V_AW+3)}, {2*WREG}, {vr(V_AW+1)}
    v_lshl_add_u32 {vr(V_A0)}, v112, 9, v114
    v_add_u32 {vr(V_A0)}, {sr(S_WBLK)}, {vr(V_A0)}
    v_xor_b32 {vr(V_A0+1)}, 64, {vr(V_A0)}
    v_bfe_u32 v113, {vr(V_L)}, 1, 3
    v_xor_b32 v113, v113, v112
    v_lshlrev_b32 v100, 4, v113
    v_lshl_add_u32 v100, v110, 7, v100
    v_bfe_u32 v113, {vr(V_L)}, 3, 2
    v_lshl_add_u32 v100, v113, 10, v100
    s_add_u32 {sr(S_T0)}, {sr(S_WBLK)}, {12*1024}
    v_add_u32 v100, {sr(S_T0)}, v100
    v_xor_b32 v101, 32, v100
    v_xor_b32 v102, 64, v100
    v_xor_b32 v103, 96, v100
    v_lshlrev_b32 {vr(V_L16)}, 4, {vr(V_L)}
    v_and_b32 v113, 31, {vr(V_L)}
    v_lshlrev_b32 {vr(V_BO)}, 1, v113
    v_xor_b32 v114, v110, v112
    v_lshlrev_b32 v114, 4, v114
    v_lshl_add_u32 {vr(V_RW)}, v113, 8, v114
    v_add_u32 {vr(V_RW)}, {sr(S_WBLK)}, {vr(V_RW)}
    v_lshlrev_b32 v114, 1, v110
    v_xor_b32 v114, v114, v109
    v_lshlrev_b32 v114, 4, v114
    v_lshl_add_u32 {vr(V_RR)}, v109, 8, v114
    s_lshl_b32 {sr(S_T0)}, {sr(S_WV)}, 12
    v_add_u32 {vr(V_RR)}, {sr(S_T0)}, {vr(V_RR)}
    v_lshlrev_b32 v114, 4, v110
    v_mad_u32_u24 {vr(V_XO)}, v109, {sr(S_K1)}, v114
    v_and_b32 v114, 15, {vr(V_L)}
    v_lshlrev_b32 v114, 2, v114
    v_bfe_u32 v115, {vr(V_L)}, 4, 1
    v_lshl_add_u32 {vr(V_PA)}, v115, 7, v114
    s_mul_i32 {sr(S_T0)}, {sr(S_RB)}, {2*112*1024}
    s_lshl_b32 {sr(S_T1)}, {sr(S_WV)}, 10
    s_add_u32 {sr(S_T0)}, {sr(S_T0)}, {sr(S_T1)}
    v_add_u32 {vr(V_H)}, {sr(S_T0)}, {vr(V_L16)}
    v_add_u32 {vr(V_H+1)}, {112*1024}, {vr(V_H)}
    v_add_u32 {vr(V_H+2)}, 4096, {vr(V_H)}
    v_add_u32 {vr(V_H+3)}, 4096, {vr(V_H+1)}
    s_mov_b32 {sr(S_LN2)}, 0x3f803f80
    s_mov_b32 {sr(S_EPS)}, 0x35c1a2a0
    """)
    p(f"""
    s_cmp_lg_u32 {sr(S_CS)}, 7
    s_cbranch_scc1 L_NPF
    s_and_b32 {sr(S_T0)}, {sr(S_RB)}, 3
    s_lshl_b32 {sr(S_T0)}, {sr(S_T0)}, 2
    s_add_u32 {sr(S_T0)}, {sr(S_T0)}, {sr(S_WV)}
    s_lshl_b32 {sr(S_T0)}, {sr(S_T0)}, 12
    """ + "\n".join(f"v_add_u32 {vr(V_W2+k)}, {sr(S_T0)}, {vr(V_L16)}" for k in range(4)) + "\n"
      + "\n".join(f"s_mov_b32 {sr(S_TAB+q)}, {(90112 if q < 5 else 0) + (q % 5) * 4688}" for q in range(10)) + "\nL_NPF:")
    p(next_h(sr(S_J)))
    for i in range(V_B0, V_B0 + 2):
        p(f"v_mov_b32 {vr(i)}, 0")
    p(f"""
    v_lshrrev_b32 v112, 2, {vr(V_L)}
    v_xor_b32 v112, v112, v111
    v_and_b32 v112, 1, v112
    v_and_b32 v113, 8, {vr(V_L)}
    v_or_b32 v112, v112, v113
    v_mov_b32 v113, {sr(S_LN2)}
    v_cmp_eq_u32 vcc, 0, v112
    v_cndmask_b32 v114, 0, v113, vcc
    v_cmp_eq_u32 vcc, 8, v112
    v_cndmask_b32 v115, 0, v113, vcc
    v_accvgpr_write_b32 {ar(A_P)}, v114
    v_accvgpr_write_b32 {ar(A_P+1)}, v114
    v_accvgpr_write_b32 {ar(A_P+2)}, v115
    v_accvgpr_write_b32 {ar(A_P+3)}, v115
    """)
    if not OPT['x2']:
        xload(p, 2); wload(p, 4); wload(p, 5)
    stamp(p)
    p.wait_vm(xt[0])
    vm0 = p.vm
    p(f"""
    s_cmp_lg_u32 s2, 0
    s_cbranch_scc1 L_NC
    v_mov_b32 v116, 1
    s_lshl_b32 {sr(S_T0)}, {sr(S_WV)}, 2
    buffer_store_dword v116, off, {sr(S_DBG,4)}, {sr(S_T0)} sc1
    L_NC:
    """)
    p.vm = vm0
    def xread(p, v):
        p.wait_vm(xt[v])
        for k in range(4):
            p(f"ds_read_b128 {vr(V_X+16*v+4*k,4)}, {vr(100+k)} offset:{v*4096}")
    cx.xread = xread
    xread(p, 0)
    stamp(p)
    cx.ln = [l.strip() for l in f"""
    v_add_f32 v104, v104, v105
    v_add_f32 v106, v106, v107
    v_mov_b32 v105, v104
    v_mov_b32 v107, v106
    v_permlane32_swap_b32 v104, v105
    v_permlane32_swap_b32 v106, v107
    v_add_f32 v104, v104, v105
    v_add_f32 v106, v106, v107
    v_mul_f32 v104, 0x3b124925, v104
    v_mul_f32 v106, 0x3b124925, v106
    v_fma_f32 v106, -v104, v104, v106
    v_max_f32 v106, 0, v106
    v_cvt_pk_bf16_f32 v105, v104, v106
    v_and_b32 v106, 0xffff0000, v105
    v_lshlrev_b32 v104, 16, v105
    v_add_f32 v106, 0x3727c5ac, v106
    v_cvt_pk_bf16_f32 v106, v106, v106
    v_and_b32 v106, 0xffff0000, v106
    v_sqrt_f32 v106, v106
    v_xor_b32 v104, 0x80000000, v104
    v_cvt_pk_bf16_f32 v106, v106, v106
    v_and_b32 v107, 0xffff0000, v106
    v_rcp_f32 {vr(V_RS)}, v107
    v_and_b32 v106, 0xffff, v106
    v_cvt_pk_bf16_f32 v104, v104, v104
    v_cmp_gt_u32 vcc, 32, {vr(V_L)}
    s_mov_b32 {sr(S_LN2)}, 0x3f317218
    v_mul_f32 {vr(V_RSL)}, {hex(LOG2E)}, {vr(V_RS)}
    v_cndmask_b32 {vr(V_XA)}, v106, v104, vcc
    v_cndmask_b32 {vr(V_XA+1)}, 0, v104, vcc
    v_cndmask_b32 {vr(V_XA+2)}, 0, v104, vcc
    v_cndmask_b32 {vr(V_XA+3)}, 0, v104, vcc
    """.split("\n") if l.strip()]
    p.wait_vm(wt[1])
    p("s_barrier")
    cx.rt = {}
    for e in range(3):
        ring_reads(p, e, 0); ring_reads(p, e, 1)
        cx.rt[e] = p.lgtag()
    return {u: p.vm - t for u, t in wt.items()}

def bias_mfma(h):
    return f"v_mfma_f32_32x32x16_bf16 {vr(V_ACC+16*h,16)}, {vr(V_B0+2*h,4)}, {vr(V_XA,4)}, 0"
def head_save(p, cx, g, s0, s1, pre=None):
    if pre: p(pre)
    for i in range(16): p(s0(i))
    g.g[0].insert(0, "\n".join(s1(i) for i in range(16, 32)))

def w2_stream(cx, reads, dmas):
    its = []
    rtag = {}
    def R(pr):
        l = w2_read_items(cx, pr, pr % 5)
        def mark(p): rtag[pr] = p.lgtag()
        return l + [F(mark, 0)]
    def D(pr):
        return [F(lambda p: p.wait_lg(rtag[pr - 5]), 1)] + w2_dma_items(cx, pr, pr % 5)
    seq = [R(reads[0])]
    for i in range(1, len(reads)):
        seq.append(R(reads[i]))
        if i - 1 < len(dmas): seq.append(D(dmas[i - 1]))
    for i in range(len(reads) - 1, len(dmas)): seq.append(D(dmas[i]))
    for s in seq: its += s
    return its

def pass0(p, cx, ea):
    g = Gaps(56)
    if OPT["x2"]:
        g.put(0, F(lambda p: cx.xload(p, 2)), 7)
        g.put(1, F(lambda p: (cx.wload(p, 4), cx.wload(p, 5))), 4)
    for v in range(4):
        g0 = 8 * v if v or not OPT["x2"] else 3
        g.put(g0, F(lambda p, v=v: cx.xload(p, v + 3)), 7)
        g.put(g0 + 1, F(lambda p, v=v: cx.wload(p, 2 * v + 6)), 2)
        if v < 3: g.put(g0 + 1, F(lambda p, v=v: cx.wload(p, 2 * v + 7)), 2)
    for s in range(6):
        g.put(8 * s + 2, F(lambda p, s=s: cx.xread(p, s + 1)), 5)
    if OPT.get('p0st'):
        for v in range(1, 7): g.put(8 * v - 1, F(lambda p: stamp(p)), 1)
    SQ, SM = V_SV, V_SV + 16
    sqm = OPT["sqm"]
    mset = [e for e in range(28) if sqm == 1 or (sqm == 2 and e % 2 == 0) or (sqm == 3 and e % 4 == 0)]
    nd = 0
    for e in range(28):
        x = vr(V_X + 4 * e, 4)
        ga = 2 * e if e < 24 else 48 + ((e - 24) >> 1)
        gb = 2 * e + 1 if e < 24 else ga
        if e in mset: g.put(ga, f"v_mfma_f32_32x32x16_bf16 {vr(SQ,16)}, {x}, {x}, {vr(SQ,16) if e else 0}")
        else:
            for i in range(4):
                r = vr(V_X + 4 * e + i)
                g.put((ga, gb)[i >> 1], f"v_dot2c_f32_bf16 v{106+(i&1)}, {r}, {r}" if nd > 1 else f"v_dot2_f32_bf16 v{106+(i&1)}, {r}, {r}, 0")
                nd += 1
        g.put(gb, f"v_mfma_f32_16x16x32_bf16 {vr(SM,4)}, {ar(A_P,4)}, {x}, {vr(SM,4) if e else 0}")
    ex = []
    if mset:
        for lvl, m in enumerate((0xAAAAAAAA, 0xCCCCCCCC, 0xFF00FF00, 0xFFFF0000)):
            ex += [f"s_mov_b32 vcc_lo, {hex(m)}", f"s_mov_b32 vcc_hi, {hex(m)}"]
            st = 1 << lvl
            ex += [f"v_cndmask_b32 {vr(SQ+i)}, {vr(SQ+i)}, {vr(SQ+i+st)}, vcc" for i in range(0, 16, 2 * st)]
        ex += ["s_mov_b32 vcc_lo, 0x0f0f0f0f", "s_mov_b32 vcc_hi, 0xf0f0f0f0", f"v_cndmask_b32 v{105 if nd else 106}, 0, {vr(SQ)}, vcc"]
    if nd: ex += ["v_add_f32 v106, v106, v107"]
    if nd and mset: ex += ["v_add_f32 v106, v106, v105"]
    ex += [f"v_mov_b32 v104, {vr(SM)}"]
    ex += cx.ln[2:]
    nl = len(ex)
    for k in range(3): g.put(51 + k, "\n".join(ex[k * nl // 3:(k + 1) * nl // 3]))
    for k, g0 in enumerate(OPT["d04"]):
        for q, it in enumerate(w2_dma_items(cx, k, k)): g.put(g0 + q, it, it.cost)
    g.put(46, f"""s_add_u32 {sr(S_CUR)}, {sr(S_J)}, 8
    s_cmp_eq_u32 {sr(S_J)}, 7
    s_cselect_b32 {sr(S_CUR)}, 24, {sr(S_CUR)}
    s_cmp_lt_u32 {sr(S_J)}, 7
    s_cselect_b32 {sr(S_CUR)}, {sr(S_J)}, {sr(S_CUR)}
    s_cselect_b64 {sr(S_NB,2)}, {sr(S_WQKV,2)}, {sr(S_W1,2)}
    s_cselect_b32 {sr(S_NSTR)}, 0, 896""")
    g.put(47, f"""s_cmp_lt_u32 {sr(S_J)}, 7
    s_cselect_b32 {sr(S_NBREC)}, 0, 3584
    s_add_u32 {sr(S_NSTR)}, {sr(S_NSTR)}, 2688
    s_mul_i32 {sr(S_NREC)}, {sr(S_NSTR)}, 448
    s_lshl_b32 {sr(S_NCOL)}, {sr(S_CUR)}, 7
    s_mov_b32 {sr(S_NBOFF)}, {sr(S_NCOL)}
    s_lshl_b32 {sr(S_NST2)}, {sr(S_NSTR)}, 6""")
    g.put(55, f"""s_cmp_eq_u32 {sr(S_CS)}, 7
    s_cselect_b64 {sr(S_W2,2)}, {sr(S_WO,2)}, {sr(S_W2,2)}
    s_cselect_b32 {sr(S_W2+2)}, 401408, {sr(S_W2+2)}""")
    def conf(p):
        p(f"v_and_b32 v96, 12, {vr(V_PA)}")
        p(f"buffer_load_dword {vr(V_PF)}, v96, {sr(S_DBG,4)}, 0 offen sc1")
        cx.ctag = p.vmtag()
    g.put(54, F(conf, 2))
    g.put(40, f"""s_and_b32 {sr(S_T0)}, {sr(S_J)}, 1
    s_sub_u32 {sr(S_MEV+1)}, {sr(S_T0)}, 1
    s_mov_b32 {sr(S_MEV)}, 0
    s_sub_u32 {sr(S_MOD)}, 0, {sr(S_T0)}
    s_mov_b32 {sr(S_MOD+1)}, 0""")
    def head(p):
        stamp(p)
    gen_pass(p, cx, "P0", g, head, ea)

def pass1(p, cx):
    g = Gaps(56)
    A = phi_items(0, 16, 96)
    A.append(f"v_cndmask_b32 {vr(V_SV+16)}, {vr(V_SV+16)}, 1.0, {sr(S_MOD,2)}\nv_cndmask_b32 {vr(V_SV+28)}, {vr(V_SV+28)}, 1.0, {sr(S_MEV,2)}")
    for i in range(0, 8, 2):
        A.append("\n".join(f"v_cvt_pk_bf16_f32 {vr(V_SV+8+k)}, {vr(V_SV+16+2*k)}, {vr(V_SV+17+2*k)}" for k in (i, i + 1)))
    A += f"""v_and_b32 v100, 31, {vr(V_L)}
    v_and_b32 v101, 7, {vr(V_L)}
    v_lshlrev_b32 v100, 7, v100
    v_lshl_add_u32 v100, v101, 4, v100
    v_lshrrev_b32 v101, 5, {vr(V_L)}
    v_lshl_add_u32 v100, v101, 3, v100
    s_add_u32 {sr(S_T0)}, {sr(S_WBLK)}, {SCR}\nv_add_u32 v100, {sr(S_T0)}, v100""".split("\n    ")
    for c in range(8):
        A.append(f"v_xor_b32 {vr(101+(c&1))}, {c*16}, v100\nds_write_b64 {vr(101+(c&1))}, {vr(V_SV+2*c,2)}")
    A.append(F(lambda p: setattr(cx, "kwt", p.lgtag()), 0))
    gi = g.spread(A, 0, cap=OPT["capA"])
    v = 1
    while 2 * (4 * v - 3) <= gi: v += 1
    cx.pre_bar[("P1", v)] = lambda p: p.wait_lg(cx.kwt)
    gb = 2 * (4 * v - 3)
    B = f"""v_lshrrev_b32 v128, 4, {vr(V_L)}
    v_bfe_u32 v129, {vr(V_L)}, 2, 2
    v_lshl_add_u32 v128, v128, 3, v129
    v_lshlrev_b32 v128, 7, v128
    v_bfe_u32 v130, {vr(V_L)}, 1, 1
    v_xor_b32 v129, v129, v130
    v_lshl_add_u32 v128, v129, 4, v128
    v_and_b32 v130, 1, {vr(V_L)}
    v_lshl_add_u32 v128, v130, 3, v128
    v_add_u32 v128, {SCR}, v128
    s_and_b32 {sr(S_T0)}, {sr(S_WV)}, 1\ns_lshl_b32 {sr(S_T0)}, {sr(S_T0)}, 5\nv_xor_b32 v129, {sr(S_T0)}, v128
    s_lshr_b32 {sr(S_T0)}, {sr(S_WV)}, 1\ns_lshl_b32 {sr(S_T0)}, {sr(S_T0)}, 5\ns_add_u32 {sr(S_T0)}, {sr(S_T0)}, 64\nv_xor_b32 v130, {sr(S_T0)}, v128
    v_xor_b32 v128, 64, v129
    v_xor_b32 v131, 64, v130
    v_add_u32 v132, {2*WREG}, v129
    v_add_u32 v133, {2*WREG}, v128
    v_add_u32 v134, {2*WREG}, v130
    v_add_u32 v135, {2*WREG}, v131
    s_lshl_b32 {sr(S_ST)}, {sr(S_J)}, 4\ns_add_u32 {sr(S_ST)}, {sr(S_ST)}, {sr(S_R)}\ns_lshl_b32 {sr(S_ST)}, {sr(S_ST)}, 12
    s_lshl_b32 {sr(S_T0)}, {sr(S_WV)}, 10\ns_add_u32 {sr(S_ST)}, {sr(S_ST)}, {sr(S_T0)}\ns_add_u32 {sr(S_ST)}, {sr(S_ST)}, {WS_KVP}""".split("\n    ")
    g.spread(B, 0, cap=OPT["capA"] + 1, end=gb)
    C = []
    tg = {}
    for m in range(4):
        aa = (129, 128, 130, 131) if m < 2 else (132, 133, 134, 135)
        o = (m & 1) * WREG
        C.append(f"ds_read_b64_tr_b16 {vr(96+8*m,2)}, v{aa[0]} offset:{o}\nds_read_b64_tr_b16 {vr(96+8*m+2,2)}, v{aa[1]} offset:{o+512}")
        C.append(f"ds_read_b64_tr_b16 {vr(96+8*m+4,2)}, v{aa[2]} offset:{o}\nds_read_b64_tr_b16 {vr(96+8*m+6,2)}, v{aa[3]} offset:{o+512}")
        C.append(F(lambda p, m=m: tg.__setitem__(m, p.lgtag()), 0))
    gi = g.spread(C, gb, cap=4)
    for m in range(4):
        def mm(p, m=m):
            p.wait_lg(tg[m])
            p(f"v_mfma_f32_16x16x32_bf16 {vr(V_SV,4)}, {vr(96+8*m,4)}, {vr(96+8*m+4,4)}, {'0' if m == 0 else vr(V_SV,4)}")
        g.put(gi + 3 + m, F(mm, 2))
    def kst(p):
        p(f"buffer_store_dwordx4 {vr(V_SV,4)}, {vr(V_L16)}, {sr(S_WS,4)}, {sr(S_ST)} offen sc1")
        cx.sttag = p.vmtag()
    g.put(gi + 8, F(kst, 1))
    def kpost(p):
        p.wait_vm(cx.sttag)
        spin_check(p, "L_CF", f"buffer_load_dword {vr(V_PF)}, v96, {sr(S_DBG,4)}, 0 offen sc1",
                   f"v_and_b32 v96, 12, {vr(V_PA)}\nv_cmp_ne_u32 vcc, 1, {vr(V_PF)}")
        p(post(1, sr(S_KFO)))
    g.put(min(55, gi + 8 + OPT["kf1"]), F(kpost, 6))
    g.spread(w2_stream(cx, [0, 1, 2, 3, 4], [5, 6, 7, 8, 9]), 2, cap=OPT["capB"], end=50)
    gen_pass(p, cx, "P1", g, lambda p: head_save(p, cx, g, save_phi, save_mul), cx.exit_after)

def pass2(p, cx):
    g = Gaps(56)
    gi = g.spread(h_items(cx), 0, cap=OPT["capA"])
    def fpost(p):
        p.wait_vm(cx.sttag)
        p(post(1, sr(S_FO)))
    g.put(gi + OPT["fl1"], F(fpost, 3))
    W = w2_stream(cx, [5, 6, 7, 8, 9], [10, 11, 12, 13])
    g.spread(W, gi + 1, cap=OPT["capB"], end=52)
    g.put(48, f"""s_add_u32 m0, {sr(S_WBLK)}, {15*1024}
    buffer_load_dwordx4 {vr(V_WB)}, {sr(S_W,4)}, {sr(S_C+6)} offen offset:1024 lds""")
    def pa(p):
        p(f"s_lshl_b32 {sr(S_PROG)}, {sr(S_RB)}, 8\ns_add_u32 {sr(S_PROG)}, {sr(S_PROG)}, {WS_FLG+FL_ROW}")
        p(f"buffer_load_dword {vr(V_PF)}, {vr(V_PA)}, {sr(S_WS,4)}, {sr(S_PROG)} offen sc1")
        cx.ptag = p.vmtag()
    g.put(53, F(pa, 3))
    pre = f"""s_mov_b64 {sr(S_NB,2)}, {sr(S_WO,2)}
    s_mov_b32 {sr(S_NREC)}, 401408
    s_movk_i32 {sr(S_NSTR)}, 896
    s_mov_b32 {sr(S_NST2)}, 14336
    s_mul_i32 {sr(S_NCOL)}, {sr(S_WV)}, {104*896}
    s_lshl_b32 {sr(S_T0)}, {sr(S_CS)}, 7
    s_add_u32 {sr(S_NCOL)}, {sr(S_NCOL)}, {sr(S_T0)}
    """ + "\n".join(f"s_mov_b32 {sr(S_M+c)}, {c}" for c in range(7)) + "\n" + f"""
    s_lshl_b32 {sr(S_ST)}, {sr(S_J)}, 6
    s_lshl_b32 {sr(S_T0)}, {sr(S_R)}, 2
    s_add_u32 {sr(S_ST)}, {sr(S_ST)}, {sr(S_T0)}
    s_add_u32 {sr(S_ST)}, {sr(S_ST)}, {sr(S_WV)}
    s_lshl_b32 {sr(S_ST)}, {sr(S_ST)}, 7
    s_add_u32 {sr(S_ST)}, {sr(S_ST)}, {WS_RS}
    v_mul_f32 v96, {vr(V_RS)}, {vr(V_RS)}
    v_lshlrev_b32 v97, 1, {vr(V_BO)}
    buffer_store_dword v96, v97, {sr(S_WS,4)}, {sr(S_ST)} offen sc1
    """ + st_addr_h(sr(S_J))
    gen_pass(p, cx, "P2", g, lambda p: head_save(p, cx, g, save_max, save_max, pre), cx.exit_after, last=True)

def pass2i(p, cx, ea, rta, red):
    g = Gaps(56)
    gi = g.spread(h_items(cx), 0, cap=OPT["capA"])
    def fpost(p):
        p.wait_vm(cx.sttag)
        p(post(sr(S_PROG), sr(S_FO)))
    g.put(gi + OPT["fl1"], F(fpost, 3))
    if red:
        RS = sr(S_WS, 4)
        reload = f"buffer_load_dword {vr(V_PF)}, {vr(V_PK)}, {RS}, {sr(S_T1)} offen sc1"
        def rp(p):
            p(reload); cx.ptag = p.vmtag()
        g.put(OPT["rchk"] - 6, F(rp, 1))
        def rc(p):
            p.wait_vm(cx.ptag)
            spin_check(p, "L_RK", reload, f"v_cmp_ne_u32 vcc, 1, {vr(V_PF)}")
            p(f"""s_lshl_b32 {sr(S_T1)}, {sr(S_R)}, 16
            s_lshl_b32 {sr(S_T0)}, {sr(S_WV)}, 10
            s_add_u32 {sr(S_T1)}, {sr(S_T1)}, {sr(S_T0)}
            s_add_u32 {sr(S_T1)}, {sr(S_T1)}, {WS_KVP}""")
        g.put(OPT["rchk"], F(rc, 8))
        lt = {}
        def dst(k): return 96 + 4 * k if k < 8 else V_SV + 4 * (k - 8)
        def ld(k):
            def f(p):
                p(f"buffer_load_dwordx4 {vr(dst(k),4)}, {vr(V_L16)}, {RS}, {sr(S_T1)} offen")
                lt[k] = p.vmtag()
                p(f"s_add_u32 {sr(S_T1)}, {sr(S_T1)}, 4096")
            return F(f, 2)
        g2_ = g.spread([ld(k) for k in range(8)], OPT["rchk"] + 1, cap=OPT["capB"] + 1)
        g3 = g.spread([ld(k) for k in range(8, 16)], max(g2_, gi + 1), cap=OPT["capB"] + 1)
        M = f"""s_and_b32 {sr(S_T0)}, {sr(S_R)}, 1
    s_cmp_eq_u32 {sr(S_T0)}, 0\ns_cselect_b32 {sr(S_MEV)}, 0x1fffffff, 0xfffffff1
    s_lshr_b32 {sr(S_T2)}, {sr(S_WV)}, 1\ns_lshl_b32 {sr(S_T2)}, {sr(S_T2)}, 4\ns_lshr_b32 {sr(S_MEV)}, {sr(S_MEV)}, {sr(S_T2)}
    s_and_b32 {sr(S_MEV)}, {sr(S_MEV)}, 0xffff\ns_mul_i32 {sr(S_MEV)}, {sr(S_MEV)}, 0x10001\ns_mov_b32 {sr(S_MEV+1)}, {sr(S_MEV)}
    s_lshl_b32 {sr(S_T0)}, {sr(S_T0)}, 1\ns_and_b32 {sr(S_T2)}, {sr(S_WV)}, 1\ns_or_b32 {sr(S_T0)}, {sr(S_T0)}, {sr(S_T2)}
    s_cmp_eq_u32 {sr(S_T0)}, 2\ns_cselect_b32 {sr(S_T2)}, 0xffff0000, -1\ns_and_b32 {sr(S_MEV)}, {sr(S_MEV)}, {sr(S_T2)}
    s_cmp_eq_u32 {sr(S_T0)}, 1\ns_cselect_b32 {sr(S_T2)}, 0xffff, -1\ns_and_b32 {sr(S_MEV+1)}, {sr(S_MEV+1)}, {sr(S_T2)}
    v_and_b32 v136, 15, {vr(V_L)}\nv_lshrrev_b32 v137, 5, {vr(V_L)}\nv_lshl_add_u32 v136, v137, 5, v136
    v_lshlrev_b32 v136, 4, v136\nv_bfe_u32 v137, {vr(V_L)}, 4, 1\nv_lshl_add_u32 v136, v137, 3, v136
    s_lshl_b32 {sr(S_T1)}, {sr(S_R)}, 11\ns_and_b32 {sr(S_T0)}, {sr(S_WV)}, 1\ns_lshl_b32 {sr(S_T0)}, {sr(S_T0)}, 10\ns_add_u32 {sr(S_T1)}, {sr(S_T1)}, {sr(S_T0)}
    s_lshr_b32 {sr(S_T0)}, {sr(S_WV)}, 1\ns_lshl_b32 {sr(S_T0)}, {sr(S_T0)}, 8\ns_add_u32 {sr(S_T1)}, {sr(S_T1)}, {sr(S_T0)}\ns_add_u32 {sr(S_T1)}, {sr(S_T1)}, {WS_KVF}""".split("\n    ")
        g4 = g.spread(M, g3 + 1, cap=4)
        A = []
        for k in range(1, 16):
            def ad(p, k=k):
                p.wait_vm(lt[k])
                for i in range(4): p(f"v_add_f32 {vr(96+i)}, {vr(96+i)}, {vr(dst(k)+i)}")
            A.append(F(ad, 5))
        A.append("\n".join(f"v_cndmask_b32 {vr(96+i)}, 0, {vr(96+i)}, {sr(S_MEV,2)}" for i in range(4)))
        A.append("v_cvt_pk_bf16_f32 v100, v96, v97\nv_cvt_pk_bf16_f32 v101, v98, v99")
        def ks(p):
            p(f"buffer_store_dwordx2 v[100:101], v136, {RS}, {sr(S_T1)} offen sc1")
            cx.ktag = p.vmtag()
        A.append(F(ks, 1))
        g5 = g.spread(A, max(g4, OPT.get("radd", 34)), cap=OPT.get("radc", 5))
        assert g5 < 55
    pre = f"""s_add_u32 {sr(S_T2)}, {sr(S_CUR)}, 2
    """ + next_h(sr(S_T2)) + "\n" + st_addr_h(sr(S_PRV)) + f""""""
    if red: pre += f"""
    s_lshl_b32 {sr(S_T1)}, {sr(S_R)}, 2
    s_add_u32 {sr(S_T1)}, {sr(S_T1)}, {sr(S_WV)}
    s_lshl_b32 {sr(S_T1)}, {sr(S_T1)}, 7
    s_add_u32 {sr(S_T1)}, {sr(S_T1)}, {WS_FLG+FL_KF1}
    v_and_b32 {vr(V_PK)}, 63, {vr(V_PA)}"""
    cx.rt = {k: p.lg - rta[k] for k in range(3)}
    gen_pass(p, cx, "P2I", g, lambda p: head_save(p, cx, g, save_max, save_max, pre), ea)
    if red:
        p.wait_vm(cx.ktag)
        p(f"""
    s_lshr_b32 {sr(S_T0)}, {sr(S_R)}, 2
    s_lshl_b32 {sr(S_T0)}, {sr(S_T0)}, 7
    s_and_b32 {sr(S_T1)}, {sr(S_R)}, 3
    s_lshl_b32 {sr(S_T1)}, {sr(S_T1)}, 2
    s_add_u32 {sr(S_T1)}, {sr(S_T1)}, {sr(S_WV)}
    s_lshl_b32 {sr(S_T1)}, {sr(S_T1)}, 2
    s_add_u32 {sr(S_T0)}, {sr(S_T0)}, {sr(S_T1)}
    s_add_u32 {sr(S_T0)}, {sr(S_T0)}, {WS_FLG+FL_KF2}
    v_mov_b32 {vr(V_FT)}, 1
    buffer_store_dword {vr(V_FT)}, off, {RS}, {sr(S_T0)} sc1
    """)
        cx.exit_after = {u: n + 1 for u, n in cx.exit_after.items()}
    p(f"""
    s_mov_b32 {sr(S_PRV)}, {sr(S_CUR)}
    s_add_u32 {sr(S_CUR)}, {sr(S_CUR)}, 2
    s_add_u32 {sr(S_PROG)}, {sr(S_PROG)}, 1
    """)

def emit_items(p, its):
    for it in its:
        if isinstance(it, str): p(it)
        else: it(p)

def idle_path(p, cx, ea1, rta1):
    ea, rta = dict(ea1), dict(rta1)
    for red in (True, False):
        q = Prog(); c2 = Ctx(); c2.pre_bar = {}; c2.w2t = {}
        q.vm = q.lg = 1000
        pass2i(q, c2, ea1, rta1, red)
        ea = {u: min(ea[u], c2.exit_after[u]) for u in ea1}
        rta = {k: min(rta[k], c2.rt_after[k]) for k in rta1}
    p(f"L_IDLE:\ns_mov_b32 {sr(S_PROG)}, 1\ns_mov_b32 {sr(S_PRV)}, {sr(S_J)}")
    p(f"s_cmp_lg_u32 {sr(S_J)}, 7\ns_cbranch_scc1 L_ILOOP")
    stamp(p)
    pass2i(p, cx, ea1, rta1, True)
    p("L_ILOOP:")
    stamp(p)
    pass2i(p, cx, ea, rta, False)
    p(f"s_cmp_lt_u32 {sr(S_CUR)}, 28\ns_cbranch_scc1 L_ILOOP")
    stamp(p)
    p(st_addr_h(sr(S_PRV)))
    p("s_nop 7")
    for i in range(32): p(save_max(i))
    emit_items(p, h_items(cx))
    p("s_waitcnt vmcnt(0)")
    p(post(sr(S_PROG), sr(S_FO)))
    stamp_out(p)
    p("s_endpgm")

def phase2(p, cx):
    ACC, OT, OB, TM = 32, 208, 240, 24
    PQ, KV, WOF, ACS = 0, 64, 96, 128
    XD, B2 = 100, 96
    S_XO, S_PK, S_MLO, S_MHI = S_CUR, S_NXT, S_MEV, S_MOD
    rowpoll = f"buffer_load_dword {vr(V_PF)}, {vr(V_PA)}, {sr(S_WS,4)}, {sr(S_PROG)} offen sc1"
    def buf(u):
        if u < 14: return "v", 144 + 8 * u
        if u < 19: return "v", 96 + 8 * (u - 14)
        if u < 23: return "a", 224 + 8 * (u - 19)
        return "v", 144 + 8 * (u - 23)
    def rr(k, a, n): return vr(a, n) if k == "v" else ar(a, n)
    ut = {}
    def load(u):
        k, a = buf(u)
        pr = u >> 1
        if pr < 12: so = sr(S_TAB + pr)
        else:
            so = sr(S_T0); p(f"s_mov_b32 {so}, {pr*8192}")
        for rt in range(2):
            p(f"buffer_load_dwordx4 {rr(k,a+4*rt,4)}, {vr(V_H+2*(u&1)+rt)}, {sr(S_WS,4)}, {so} offen")
        ut[u] = p.vmtag()
    def unit(u, mid=None):
        k, a = buf(u)
        p.wait_vm(ut[u])
        for ct in range(2):
            for rt in range(2):
                d = ACC + 32 * ct + 16 * rt
                p(f"v_mfma_f32_32x32x16_bf16 {vr(d,16)}, {ar(8*u+4*ct,4)}, {rr(k,a+4*rt,4)}, {'0' if u == 0 else vr(d,16)}")
                if mid and ct == 0 and rt == 0: mid()
    stamp(p)
    vm0, lg0 = p.vm, p.lg
    p(f"s_cmp_lt_u32 {sr(S_J)}, 7\ns_cbranch_scc1 L_EQ")
    p(st_addr_h(sr(S_CUR)))
    for i in range(32): p(save_max(i))
    emit_items(p, h_items(cx))
    p("s_branch L_EJ\nL_EQ:")
    p.vm = vm0
    p(f"""
    s_lshl_b32 {sr(S_ST)}, {sr(S_R)}, 2
    s_add_u32 {sr(S_ST)}, {sr(S_ST)}, {sr(S_WV)}
    s_mul_i32 {sr(S_ST)}, {sr(S_ST)}, {56*512}
    s_lshl_b32 {sr(S_T0)}, {sr(S_CUR)}, 12
    s_add_u32 {sr(S_ST)}, {sr(S_ST)}, {sr(S_T0)}
    s_add_u32 {sr(S_ST)}, {sr(S_ST)}, {WS_PQ}
    """)
    for i in range(32): p(save_phi(i))
    emit_items(p, q_items(cx, 96))
    p("L_EJ:")
    stamp(p)
    p.wait_vm(cx.ptag)
    spin_check(p, "L_PA", rowpoll, f"v_cmp_gt_u32 vcc, 1, {vr(V_PF)}")
    stamp(p)
    for u in range(OPT["n0"]): load(u)
    for pr in range(10, 14): emit_items(p, w2_read_items(cx, pr, pr % 5))
    p(f"""
    s_lshl_b32 {sr(S_XO)}, {sr(S_RB)}, 2
    s_add_u32 {sr(S_XO)}, {sr(S_XO)}, {sr(S_WV)}
    s_mul_i32 {sr(S_XO)}, {sr(S_XO)}, {16*896}
    s_lshl_b32 {sr(S_T1)}, {sr(S_CS)}, 7
    s_add_u32 {sr(S_XO)}, {sr(S_XO)}, {sr(S_T1)}
    s_lshl_b32 {sr(S_PK)}, {sr(S_WV)}, 7
    s_add_u32 {sr(S_PK)}, {sr(S_PK)}, {WS_FLG+FL_KF2}
    s_mov_b32 {sr(S_MLO)}, -1
    s_mov_b32 {sr(S_MLO+1)}, 0
    s_mov_b32 {sr(S_MHI)}, 0
    s_mov_b32 {sr(S_MHI+1)}, -1
    v_and_b32 v22, 63, {vr(V_PA)}
    v_mov_b32 v23, 0
    v_cmp_eq_u32 vcc, 28, v22
    v_cndmask_b32 v23, v23, 3, vcc
    v_cmp_eq_u32 vcc, 60, v22
    v_cndmask_b32 v23, v23, 4, vcc
    v_min_u32 v19, 2, v23
    v_sub_u32 v20, 2, v19
    v_lshrrev_b32 v18, 3, {vr(V_L)}
    v_lshlrev_b32 v18, 2, v18
    v_and_b32 v21, 7, {vr(V_L)}
    v_lshlrev_b32 v21, 4, v21
    """)
    p.wait_vm(cx.sttag)
    p(post(2, sr(S_FO)))
    p("s_barrier")
    stamp(p)
    for u in range(OPT["n0"], 16): load(u)
    stamp(p)
    kvpoll = f"buffer_load_dword {vr(V_PK)}, v22, {sr(S_WS,4)}, {sr(S_PK)} offen sc1"
    P0 = (0, 3, 7, 10)
    htag = {}
    def issue_b():
        p(rowpoll); cx.ptag = p.vmtag()
    def issue_k():
        p(rowpoll); p(kvpoll); cx.ptag = p.vmtag()
    def check_b():
        p.wait_vm(cx.ptag)
        spin_check(p, "L_PB", rowpoll, f"v_cmp_gt_u32 vcc, v20, {vr(V_PF)}")
        for u in range(16, 23): load(u)
        p(f"""
        s_mul_i32 {sr(S_T1)}, {sr(S_RB)}, {2*56*512}
        s_mul_i32 {sr(S_T2)}, {sr(S_WV)}, {14*512}
        s_add_u32 {sr(S_T1)}, {sr(S_T1)}, {sr(S_T2)}
        s_add_u32 {sr(S_T1)}, {sr(S_T1)}, {WS_PQ}
        """)
        for hh in range(4):
            for rt in range(2):
                p(f"s_add_u32 {sr(S_T2)}, {sr(S_T1)}, {rt*56*512 + P0[hh]*512}")
                for ks in range(2):
                    p(f"buffer_load_dwordx4 {ar(PQ+16*hh+8*rt+4*ks,4)}, {vr(V_L16)}, {sr(S_WS,4)}, {sr(S_T2)} offen offset:{ks*1024}")
    def check_k():
        p.wait_vm(cx.ptag)
        spin_check(p, "L_PI", rowpoll, f"v_cmp_gt_u32 vcc, v19, {vr(V_PF)}")
        for u in range(23, 25): load(u)
        spin_check(p, "L_PK", kvpoll, f"v_cmp_ne_u32 vcc, 1, {vr(V_PK)}")
        p(f"""
        s_lshl_b32 {sr(S_T0)}, {sr(S_WV)}, 13
        s_add_u32 {sr(S_T0)}, {sr(S_T0)}, {WS_KVF}
        """)
        for hh in range(4):
            for ks in range(2):
                o = (2 * hh + ks) * 1024
                if o == 4096: p(f"s_add_u32 {sr(S_T0)}, {sr(S_T0)}, 4096")
                p(f"buffer_load_dwordx4 {ar(KV+8*hh+4*ks,4)}, {vr(V_L16)}, {sr(S_WS,4)}, {sr(S_T0)} offen offset:{o%4096}")
            htag[hh] = p.vmtag()
    p("s_waitcnt lgkmcnt(0)")
    def issue_l():
        p(rowpoll); cx.ptag = p.vmtag()
    for u in range(25):
        unit(u, {OPT["pbi"]: issue_b, OPT["pki"]: issue_k, 24: issue_l}.get(u))
        if u == OPT["pbc"]:
            stamp(p)
            check_b()
            stamp(p)
        if u == OPT["pkc"]:
            stamp(p)
            check_k()
            stamp(p)
    stamp(p)
    def check_l():
        p.wait_vm(cx.ptag)
        spin_check(p, "L_PL", rowpoll, f"v_cmp_gt_u32 vcc, v23, {vr(V_PF)}")
        for u in range(25, 28): load(u)
        p(f"buffer_load_dwordx4 {vr(XD,4)}, {vr(V_XO)}, {sr(S_X,4)}, {sr(S_XO)} offen")
        p(f"s_add_u32 {sr(S_ST)}, {sr(S_XO)}, 7168")
        p(f"s_lshl_b32 {sr(S_T1)}, {sr(S_CS)}, 7")
        p(f"buffer_load_dwordx4 {vr(XD+4,4)}, {vr(V_XO)}, {sr(S_X,4)}, {sr(S_ST)} offen")
        p(f"buffer_load_dwordx4 {vr(B2,4)}, v21, {sr(S_B2,4)}, {sr(S_T1)} offen")
        p(f"""
        s_lshl_b32 {sr(S_T1)}, {sr(S_J)}, 7
        s_lshl_b32 {sr(S_T0)}, {sr(S_RB)}, 2
        s_add_u32 {sr(S_T1)}, {sr(S_T1)}, {sr(S_T0)}
        s_add_u32 {sr(S_T1)}, {sr(S_T1)}, {sr(S_WV)}
        s_lshl_b32 {sr(S_T1)}, {sr(S_T1)}, 6
        s_add_u32 {sr(S_T1)}, {sr(S_T1)}, {WS_RS}
        buffer_load_dword v108, v18, {sr(S_WS,4)}, {sr(S_T1)} offen
        buffer_load_dword v110, v18, {sr(S_WS,4)}, {sr(S_T1)} offen offset:32
        """)
        cx.xtag = p.vmtag()
    for hh in range(4):
        wf = WOF + 16 * (hh & 1)
        for q in range(2):
            for ct in range(2):
                for t in range(2):
                    p(f"ds_read_b64_tr_b16 {ar(wf+8*q+4*ct+2*t,2)}, {vr(V_A0+ct)} offset:{wpos(P0[hh]+2*q+t)*1024}")
        p.wait_vm(htag[hh])
        for ks in range(2):
            for rt in range(2):
                c = "0" if ks == 0 else vr(OT + 16 * rt, 16)
                p(f"v_mfma_f32_32x32x16_bf16 {vr(OT+16*rt,16)}, {ar(KV+8*hh+4*ks,4)}, {ar(PQ+16*hh+8*rt+4*ks,4)}, {c}")
        if hh == OPT.get("plc", 2):
            stamp(p)
            check_l()
            stamp(p)
        zi = 0 if hh & 1 else 12
        for rt in range(2):
            o = OT + 16 * rt
            p(f"v_mov_b32 {vr(TM)}, {vr(o+zi)}")
            p(f"v_mov_b32 {vr(TM+1)}, {vr(o+zi)}")
            p(f"v_permlane32_swap_b32 {vr(TM)}, {vr(TM+1)}")
            d = TM if hh & 1 else TM + 1
            p(f"v_add_f32 {vr(TM+2)}, 0x358637bd, {vr(d)}")
            p(f"v_rcp_f32 {vr(TM+2)}, {vr(TM+2)}")
            p(f"v_cndmask_b32 {vr(o+zi)}, {vr(o+zi)}, 0, {sr(S_MLO if hh & 1 else S_MHI,2)}")
            for i in range(8):
                p(f"v_pk_mul_f32 {vr(o+2*i,2)}, {vr(o+2*i,2)}, {vr(TM+2,2)} op_sel_hi:[1,0]")
            for i in range(8):
                p(f"v_cvt_pk_bf16_f32 {vr(OB+8*rt+i)}, {vr(o+2*i)}, {vr(o+2*i+1)}")
        p("s_waitcnt lgkmcnt(0)")
        for q in range(2):
            for ct in range(2):
                for rt in range(2):
                    a = ACS + 32 * ct + 16 * rt
                    c = "0" if (hh == 0 and q == 0) else ar(a, 16)
                    p(f"v_mfma_f32_32x32x16_bf16 {ar(a,16)}, {ar(wf+8*q+4*ct,4)}, {vr(OB+8*rt+4*q,4)}, {c}")
    stamp(p)
    def dump(f, acc, base):
        for ct in range(2):
            for a in range(4):
                p(f"v_xor_b32 {vr(TM+(a&1))}, {(8*ct+2*a)*16}, {vr(V_RW)}")
                for rt in range(2):
                    p(f"ds_write_b128 {vr(TM+(a&1))}, {f(acc+32*ct+16*rt+4*a,4)} offset:{base+rt*8192}")
    unit(25)
    dump(ar, ACS, 0)
    unit(26); unit(27)
    stamp(p)
    dump(vr, ACC, 16384)
    p("s_waitcnt lgkmcnt(0)")
    p("s_barrier")
    stamp(p)
    R, B, X, E = 128, 32, 40, 48
    p(f"v_mov_b32 {vr(TM+3)}, {vr(V_RR)}")
    p(f"v_mov_b32 v20, {vr(V_XO)}")
    p(f"v_xor_b32 {vr(TM)}, 16, {vr(V_RR)}")
    p(f"v_add_u32 {vr(TM+1)}, {2*WREG}, {vr(V_RR)}")
    p(f"v_add_u32 {vr(TM+2)}, {2*WREG}, {vr(TM)}")
    tg = {}
    for ps in range(2):
        for arr in range(2):
            for sw in range(4):
                for c in range(2):
                    a = (TM + 3, TM, TM + 1, TM + 2)[c + 2 * (sw >> 1)]
                    p(f"ds_read_b128 {vr(R+64*ps+32*arr+8*sw+4*c,4)}, {vr(a)} offset:{(sw&1)*WREG + arr*16384 + ps*2048}")
            tg[ps, arr] = p.lgtag()
    p.wait_vm(cx.xtag)
    for i in range(4):
        p(f"v_lshlrev_b32 {vr(B+2*i)}, 16, {vr(B2+i)}")
        p(f"v_and_b32 {vr(B+2*i+1)}, 0xffff0000, {vr(B2+i)}")
    p(f"s_mov_b32 {sr(S_T1)}, {hex(LOG2E | 0x80000000)}")
    p(f"s_mov_b32 {sr(S_MEV)}, 1.0")
    p(f"s_mov_b32 {sr(S_MEV+1)}, 1.0")
    for ps in range(2):
        for arr in range(2):
            p.wait_lg(tg[ps, arr])
            b = R + 64 * ps + 32 * arr
            for i in range(4):
                p(f"v_pk_add_f32 {vr(b+2*i,2)}, {vr(b+2*i,2)}, {vr(b+8+2*i,2)}")
                p(f"v_pk_add_f32 {vr(b+16+2*i,2)}, {vr(b+16+2*i,2)}, {vr(b+24+2*i,2)}")
            for i in range(4):
                p(f"v_pk_add_f32 {vr(b+2*i,2)}, {vr(b+2*i,2)}, {vr(b+16+2*i,2)}")
        s_ = R + 64 * ps; o_ = s_ + 32
        for i in range(4):
            p(f"v_pk_fma_f32 {vr(o_+2*i,2)}, {vr(o_+2*i,2)}, {vr(108+2*ps,2)}, {vr(B+2*i,2)} op_sel_hi:[1,0,1]")
        for i in range(8):
            p(f"v_mul_f32 {vr(E+i)}, {sr(S_T1)}, {vr(o_+i)}")
        for i in range(8):
            p(f"v_exp_f32 {vr(E+i)}, {vr(E+i)}")
        for i in range(4):
            p(f"v_lshlrev_b32 {vr(X+2*i)}, 16, {vr(XD+4*ps+i)}")
            p(f"v_and_b32 {vr(X+2*i+1)}, 0xffff0000, {vr(XD+4*ps+i)}")
        for i in range(4):
            p(f"v_pk_add_f32 {vr(E+2*i,2)}, {vr(E+2*i,2)}, {sr(S_MEV,2)}")
        for i in range(8):
            p(f"v_rcp_f32 {vr(E+i)}, {vr(E+i)}")
        for i in range(4):
            p(f"v_pk_mul_f32 {vr(o_+2*i,2)}, {vr(o_+2*i,2)}, {vr(s_+2*i,2)}")
        for i in range(4):
            p(f"v_pk_fma_f32 {vr(X+2*i,2)}, {vr(o_+2*i,2)}, {vr(E+2*i,2)}, {vr(X+2*i,2)}")
        for i in range(4):
            p(f"v_cvt_pk_bf16_f32 {vr(s_+i)}, {vr(X+2*i)}, {vr(X+2*i+1)}")
        so = sr(S_XO) if ps == 0 else sr(S_ST)
        p(f"buffer_store_dwordx4 {vr(s_,4)}, v20, {sr(S_OUT,4)}, {so} offen")
    stamp_out(p)

def gen_all(p):
    cx = Ctx(); cx.pre_bar = {}; cx.w2t = {}
    ea = prologue(p, cx)
    pass0(p, cx, ea)
    stamp(p)
    pass1(p, cx)
    ea1, rta1 = dict(cx.exit_after), dict(cx.rt_after)
    p(f"s_cmp_eq_u32 {sr(S_CS)}, 7\ns_cbranch_scc1 L_IDLE")
    stamp(p)
    pass2(p, cx)
    phase2(p, cx)
    p("L_END:\ns_endpgm")
    idle_path(p, cx, ea1, rta1)

if __name__ == "__main__":
    out = sys.argv[1]
    for a in sys.argv[2:]:
        k, v = a.split("=")
        OPT[k] = v if not v.lstrip("-").isdigit() else int(v)
    build([(NAME + "_kernel", gen_all, 256, 256, 163840, 512, 256)], out)
```

```python
import re

TRANS = ("v_exp_f32", "v_log_f32", "v_rcp_f32", "v_rsq_f32", "v_sqrt_f32", "v_sin_f32", "v_cos_f32", "v_rcp_iflag_f32")
REGRE = re.compile(r"\b([vas])(?:(\d+)|\[(\d+):(\d+)\])")

def regs_of(tok):
    out = set()
    t = tok.strip()
    if t.startswith("vcc"):
        return {("s", 106), ("s", 107)}
    if t == "m0":
        return {("m0", 0)}
    if t.startswith("exec"):
        return {("exec", 0)}
    for m in REGRE.finditer(t):
        k = m.group(1)
        if m.group(2) is not None:
            out.add((k, int(m.group(2))))
        else:
            for i in range(int(m.group(3)), int(m.group(4)) + 1):
                out.add((k, i))
    return out

class Ins:
    def __init__(self, text):
        self.text = text
        t = text.split(";")[0].strip()
        self.raw = t
        self.kind = "other"
        self.op = ""
        self.dst = set(); self.src = set(); self.srcC = set(); self.srcAB = set(); self.data = set()
        self.passes = 0
        self.states = 1
        if not t or t.endswith(":") or t.startswith("."):
            self.kind = "label" if t.endswith(":") else "none"
            self.states = 0
            return
        sp = t.split(None, 1)
        op = sp[0]
        for suf in ("_e32", "_e64", "_dpp", "_sdwa"):
            if op.endswith(suf):
                op = op[: -len(suf)]
        self.op = op
        rest = sp[1] if len(sp) > 1 else ""
        ops = []; cur = ""; d = 0
        for ch in rest:
            if ch == "[": d += 1
            if ch == "]": d -= 1
            if ch == "," and d == 0:
                ops.append(cur); cur = ""
            else:
                cur += ch
        ops.append(cur)
        ops = [o.strip() for o in ops]
        if ops:
            last = ops[-1].split()
            self.mods = last[1:]
            ops[-1] = last[0] if last else ""
        self.ops = ops
        if op == "s_nop":
            self.kind = "salu"; self.states = int(ops[0], 0) + 1; return
        if op.startswith("v_mfma"):
            self.kind = "mfma"
            self.passes = 8 if "32x32x16" in op else 4
            self.dst = regs_of(ops[0]); self.srcAB = regs_of(ops[1]) | regs_of(ops[2]); self.srcC = regs_of(ops[3])
            self.src = self.srcAB | self.srcC
            self.cstr = ops[3]; self.dstr = ops[0]
            return
        if op.startswith("v_"):
            self.kind = "valu"
            self.dst = regs_of(ops[0])
            k = 1
            if op in ("v_add_co_u32", "v_sub_co_u32", "v_addc_co_u32", "v_subb_co_u32", "v_subrev_co_u32"):
                self.dst |= regs_of(ops[1]); k = 2
            for o in ops[k:]:
                self.src |= regs_of(o)
            if op.startswith("v_permlane") and "swap" in op:
                self.dst |= regs_of(ops[1]); self.src |= regs_of(ops[0])
            if op.startswith(("v_dot2c", "v_fmac", "v_mac", "v_pk_fmac", "v_dot4c", "v_writelane")):
                self.src |= regs_of(ops[0])
            if op.startswith("v_cndmask") and len(ops) == 3:
                self.src |= regs_of("vcc")
            if op.startswith("v_cmpx"):
                self.dst |= {("exec", 0)}
            return
        if op.startswith("ds_"):
            self.kind = "ds"
            if op.startswith(("ds_read", "ds_bpermute", "ds_permute", "ds_swizzle")):
                self.dst = regs_of(ops[0])
                for o in ops[1:]: self.src |= regs_of(o)
            else:
                for o in ops: self.src |= regs_of(o)
            return
        if op.startswith(("buffer_", "global_")):
            self.kind = "vmem"
            self.lds = "lds" in self.mods
            if "load" in op and not self.lds:
                self.dst = regs_of(ops[0])
                for o in ops[1:]: self.src |= regs_of(o)
            else:
                for o in ops: self.src |= regs_of(o)
                if "store" in op and ("x3" in op or "x4" in op):
                    self.data = regs_of(ops[0]) if op.startswith("buffer_") else regs_of(ops[1])
                if "atomic" in op and "sc0" in self.mods:
                    self.dst = regs_of(ops[0])
            if self.lds: self.src |= {("m0", 0)}
            return
        if op.startswith("s_"):
            self.kind = "salu"
            if op.startswith(("s_cmp", "s_cbranch", "s_branch", "s_waitcnt", "s_barrier", "s_endpgm", "s_setpc", "s_sleep", "s_setprio", "s_bitcmp", "s_set_gpr")):
                for o in ops: self.src |= regs_of(o)
            else:
                self.dst = regs_of(ops[0])
                for o in ops[1:]: self.src |= regs_of(o)
            return

def vonly(s):
    return {r for r in s if r[0] in ("v", "a")}
def sonly(s):
    return {r for r in s if r[0] == "s"}

def need(p, c):
    n = 0
    if p.kind == "valu":
        pv = vonly(p.dst); ps = sonly(p.dst)
        isdot = p.op.startswith("v_dot")
        if c.kind == "mfma" and pv & c.src: n = max(n, 3 if isdot else 2)
        if c.kind == "valu":
            if c.op.startswith("v_permlane") and pv & c.src: n = max(n, 2)
            if "dpp" in c.raw and pv & c.src: n = max(n, 2)
            if c.op in ("v_readfirstlane_b32", "v_readlane_b32") and pv & c.src: n = max(n, 1)
            if p.op in TRANS and pv & c.src: n = max(n, 1)
            if ps & c.src: n = max(n, 4 if c.op in ("v_readlane_b32", "v_writelane_b32") else 2)
            if isdot and pv & (c.src | c.dst):
                if c.op == p.op and not (pv & (regs_of(c.ops[1]) | regs_of(c.ops[2]))): pass
                else: n = max(n, 3)
            if "op_sel" in p.raw and not p.op.startswith("v_pk") and not isdot and pv & (c.src | c.dst): n = max(n, 1)
        if c.kind in ("vmem", "ds"):
            if c.kind == "vmem" and ps & c.src: n = max(n, 5)
            if isdot and pv & c.src: n = max(n, 3)
            if p.op in TRANS and pv & c.src: n = max(n, 1)
        if ("exec", 0) in p.dst:
            if c.kind == "mfma" or c.op.startswith(("v_permlane", "v_readfirstlane", "v_readlane", "v_writelane")): n = max(n, 4)
            if "dpp" in c.raw: n = max(n, 5)
    if p.kind == "mfma":
        big = 12 if p.passes == 8 else 8
        if c.kind in ("valu", "vmem", "ds") and p.dst & (c.src | c.dst): n = max(n, big)
        if c.kind == "mfma":
            if p.dst & c.srcAB: n = max(n, big)
            if p.dst & c.srcC and not (c.cstr == p.dstr and c.passes == p.passes): n = max(n, big - 2)
            if p.dst & c.dst and not (p.dst & c.srcC): n = max(n, big)
        if c.kind == "valu" and p.srcC & c.dst: n = max(n, 7 if p.passes == 8 else 3)
    if p.kind == "salu" and ("m0", 0) in p.dst and ("m0", 0) in c.src and c.kind == "vmem": n = max(n, 1)
    if p.kind == "vmem" and p.data and (p.data & c.dst): n = max(n, 2 if c.kind == "valu" else 1)
    return n

HOIST = [True]
def hoist_m0(lines):
    L = list(lines)
    for i in range(1, len(L) - 1):
        a, b, c = L[i - 1].strip(), L[i].strip(), L[i + 1].strip()
        if not (b.startswith("s_add_u32 m0,") and c.startswith("buffer_load") and c.endswith(" lds")): continue
        op = a.split()[0] if a else ""
        if not a or a.endswith(":") or "m0" in a or a.endswith(" lds") or a.startswith((";", ".")): continue
        if op.startswith(("s_cselect", "s_cbranch", "s_branch", "s_addc", "s_subb", "s_cmp", "s_endpgm", "s_setpc", "s_swappc", "s_cmov")): continue
        L[i - 1], L[i] = L[i], L[i - 1]
    return L

def pad_hazards(lines):
    if HOIST[0]: lines = hoist_m0(lines)
    out = []
    hist = []
    for text in lines:
        c = Ins(text)
        if c.kind in ("none", "label"):
            out.append(text); continue
        req = 0
        dist = 0
        for p in reversed(hist):
            r = need(p, c) - dist
            if r > req: req = r
            dist += p.states
            if dist > 14: break
        if req > 0:
            nop = Ins(f"s_nop {req-1}")
            out.append(f"  s_nop {req-1}")
            hist.append(nop)
        out.append(text)
        hist.append(c)
        if len(hist) > 40: hist = hist[-20:]
    return out

class Prog:
    def __init__(self):
        self.lines = []
        self.vm = 0
        self.lg = 0
        self.uid = 0
    def __call__(self, text):
        for l in text.strip("\n").split("\n"):
            l = l.strip()
            if not l: continue
            op = l.split()[0]
            if op.startswith(("buffer_", "global_")): self.vm += 1
            if op.startswith("ds_"): self.lg += 1
            self.lines.append(l if l.endswith(":") else "  " + l)
        return self
    def label(self, base):
        self.uid += 1
        return f"L{base}_{self.uid}"
    def vmtag(self): return self.vm
    def lgtag(self): return self.lg
    def wait_vm(self, tag):
        n = self.vm - tag
        assert n >= 0
        self(f"s_waitcnt vmcnt({min(n,63)})")
    def wait_lg(self, tag):
        n = self.lg - tag
        assert n >= 0
        self(f"s_waitcnt lgkmcnt({min(n,15)})")
    def text(self):
        return "\n".join(pad_hazards(self.lines))
```

```python
import sys
sys.path.insert(0, "gen")
from asmlib import *
import gen as G1
from gen import vr, ar, sr, NAME, build, LOG2E

WS_H, WS_PQ, WS_KVP, WS_KVF, WS_FLG, WS_SIZE = 0, 0x700000, 0x8C0000, 0x9C0000, 0x9D0000, 0xA00000
WS_RS = 0x9E0000
FL_ROW, FL_KF1, FL_KF2 = 0, 64 * 128, 128 * 128
WREG = 40960
OPT = dict(dbg=False, mapping="C", dstyle="dot", spin=200000)

S_X, S_W, S_WS, S_B, S_W2, S_OUT, S_B2, S_DBG = 4, 8, 12, 16, 20, 24, 28, 32
S_WQKV, S_W1, S_WO = 36, 38, 40
S_NB, S_NREC, S_NCOL, S_NSTR, S_NBREC, S_NBOFF, S_NST2 = 42, 44, 45, 46, 47, 48, 49
S_C, S_M = 50, 57
S_WV, S_WBLK, S_R, S_J, S_RB, S_CS = 64, 65, 66, 67, 68, 69
S_ST, S_T0, S_T1, S_T2, S_EPS, S_LN2 = 74, 75, 76, 77, 78, 79
S_MEV, S_MOD = 80, 82
S_PROG, S_NXT, S_CUR, S_SPIN = 84, 85, 86, 87
S_TAB = 88
S_K1, S_K2 = 100, 101
S_ROWM = 3
V_L, V_AW = 1, 2
V_RS, V_RSL, V_L16, V_KFO = 6, 7, 8, 9
V_WA, V_WB = 10, 11
V_B0, V_B1, V_XA = 12, 13, 16
V_NB = 14
A_P, A_CF, A_CS = 160, 164, 172
V_CA = 128
XCH = 19 * 1024
V_ROW, V_TP, V_BO = 20, 21, 22
V_W2 = 23
V_A0 = 27
V_FO, V_FT, V_STAMP = 29, 30, 31
V_ACC, V_SV, V_TMP, V_X = 32, 64, 96, 144
A_RING = 224
SCR = 16 * 1024

def pos(u):
    return u if u % 2 == 0 else (u + 2 if u < 13 else 1)

def stamp(p, real=False):
    if not OPT["dbg"]: return
    p("s_memrealtime s[70:71]" if real else "s_memtime s[70:71]")
    p.lg += 0
    p("s_waitcnt lgkmcnt(0)")
    p("s_mov_b64 exec, s[72:73]")
    p(f"v_mov_b32 v{V_STAMP}, s70")
    p("s_mov_b64 exec, -1")
    p("s_lshl_b64 s[72:73], s[72:73], 1")
def stamp_init(p):
    if not OPT["dbg"]: return
    p("s_mov_b64 s[72:73], 1")
    p(f"v_mov_b32 v{V_STAMP}, 0")
    stamp(p, True); stamp(p)
def stamp_out(p):
    if not OPT["dbg"]: return
    stamp(p); stamp(p, True)
    p(f"""
    s_lshl_b32 s70, s2, 2
    s_add_u32 s70, s70, {sr(S_WV)}
    s_lshl_b32 s70, s70, 8
    s_add_u32 s70, s70, 0xA00000
    v_lshlrev_b32 v0, 2, {vr(V_L)}
    s_mov_b32 {sr(S_WS+2)}, 0x1000000
    buffer_store_dword v{V_STAMP}, v0, {sr(S_WS,4)}, s70 offen
    """)

class Gaps:
    def __init__(self, n, cap=4):
        self.g = [[] for _ in range(n)]
        self.cost = [0] * n
        self.cap = cap
    def put(self, gi, item, cost=None):
        c = cost if cost is not None else (item.count("\n") + 1 if isinstance(item, str) else 1)
        self.g[gi].append(item); self.cost[gi] += c
    def spread(self, items, start, cap=None, end=None):
        cap = cap or self.cap
        gi = start
        for it in items:
            c = it.count("\n") + 1 if isinstance(it, str) else getattr(it, "cost", 1)
            while self.cost[gi] + c > cap and self.cost[gi] > 0 and gi + 1 < (end or len(self.g)):
                gi += 1
            self.put(gi, it, c)
        return gi
    def emit(self, p, gi):
        for it in self.g[gi]:
            if isinstance(it, str): p(it)
            else: it(p)

def F(fn, cost=1):
    fn.cost = cost
    return fn

def ring_reads(p, e, half):
    st = A_RING + 8 * (e % 4)
    ee = e % 28
    off = pos(ee >> 1) * 1024
    a = V_AW + half + 2 * (ee & 1)
    p(f"ds_read_b64_tr_b16 {ar(st+4*half,2)}, {vr(a)} offset:{off}")
    p(f"ds_read_b64_tr_b16 {ar(st+4*half+2,2)}, {vr(a)} offset:{off+512}")

class Ctx:
    pass

def spin_check(p, lab, reload, cmp_lines):
    p(f"s_mov_b32 {sr(S_SPIN)}, {OPT['spin']}")
    p(f"{lab}_c:")
    p(cmp_lines)
    p(f"s_cbranch_vccz {lab}_ok")
    vm0 = p.vm
    p(f"s_sub_u32 {sr(S_SPIN)}, {sr(S_SPIN)}, 1")
    p(f"s_cbranch_scc1 {lab}_ok")
    p(reload)
    p("s_waitcnt vmcnt(0)")
    p(f"s_branch {lab}_c")
    p.vm = vm0
    p(f"{lab}_ok:")

def switch_items():
    now = f"""s_mov_b64 {sr(S_W,2)}, {sr(S_NB,2)}
    s_mov_b32 {sr(S_W+2)}, {sr(S_NREC)}
    s_mul_i32 {sr(S_C)}, {sr(S_M)}, {sr(S_NST2)}
    v_mad_u32_u24 {vr(V_WA)}, {vr(V_ROW)}, {sr(S_NSTR)}, {vr(V_TP)}
    v_add_u32 {vr(V_WA)}, {sr(S_NCOL)}, {vr(V_WA)}"""
    later = [f"""s_lshr_b32 {sr(S_T2)}, {sr(S_NST2)}, 1
    s_sub_u32 {sr(S_T2)}, {sr(S_T2)}, 1024
    v_add_u32 {vr(V_WB)}, {sr(S_T2)}, {vr(V_WA)}"""]
    for c in range(1, 7):
        later.append(f"s_mul_i32 {sr(S_C+c)}, {sr(S_M+c)}, {sr(S_NST2)}")
    return now, later

def cs_items(cx, name, g):
    tg = {}
    for u in range(14):
        v = u >> 1
        g0 = (0, 5)[v] + (u & 1) if v < 2 else 2 * (4 * v - 3) + (u & 1)
        f = A_CF + 4 * (u & 1)
        def rd(p, u=u, f=f):
            for ct in range(2):
                p(f"ds_read_b64_tr_b16 {ar(f+2*ct,2)}, {vr(V_A0+ct)} offset:{pos(u)*1024}")
            tg[u] = p.lgtag()
        def mm(p, u=u, f=f):
            p.wait_lg(tg[u])
            p(f"v_mfma_f32_16x16x32_bf16 {ar(A_CS,4)}, {ar(A_P,4)}, {ar(f,4)}, {ar(A_CS,4) if u else 0}")
        g.put(g0, F(rd, 2), 2)
        g.put(g0 + 3, F(mm, 2), 2)
    c = V_CA
    g.put(47, f"v_lshl_add_u32 {vr(c+3)}, {sr(S_WV)}, 2, {vr(V_L16)}")
    g.put(48, f"""v_accvgpr_read_b32 {vr(c)}, {ar(A_CS)}
    v_cvt_pk_bf16_f32 {vr(c+1)}, {vr(c)}, {vr(c)}
    v_and_b32 {vr(c+1)}, 0xffff0000, {vr(c+1)}
    v_sub_f32 {vr(c)}, {vr(c)}, {vr(c+1)}
    v_cvt_pk_bf16_f32 {vr(c)}, {vr(c+1)}, {vr(c)}""")
    def wr(p):
        p(f"ds_write_b32 {vr(c+3)}, {vr(c)} offset:{XCH}")
        cx.xwt = p.lgtag()
        p(f"v_lshlrev_b32 {vr(c+2)}, 3, {vr(V_BO)}")
    g.put(49, F(wr, 2), 2)
    def rd2(p):
        p(f"ds_read_b128 {vr(c+4,4)}, {vr(c+2)} offset:{XCH+512}")
        p(f"ds_read_b128 {vr(c,4)}, {vr(c+2)} offset:{XCH}")
        tg["a"] = p.lgtag()
    g.put(50, F(rd2, 2), 2)
    def cm(p):
        p(f"v_cmp_gt_u32 vcc, 32, {vr(V_L)}")
        p.wait_lg(tg["a"])
        p(f"v_cndmask_b32 {vr(c)}, {vr(V_B0)}, {vr(c)}, vcc\nv_cndmask_b32 {vr(c+4)}, {vr(V_B1)}, {vr(c+4)}, vcc")
    g.put(53, F(cm, 4), 4)
    g.pre = {}
    for h in range(2):
        g.put(54 + h, f"v_mfma_f32_32x32x16_bf16 {vr(V_ACC+16*h,16)}, {vr(c+4*h,4)}, {vr(V_XA,4)}, {vr(V_ACC+16*h,16)}")

def gen_pass(p, cx, name, gaps, head, entry_after, last=False):
    vm_entry = p.vm
    cx.ea = lambda u: min(63, entry_after[u] + (p.vm - vm_entry))
    head(p)
    nxt = {}
    def wait_piece(u, cur=True):
        if cur and u not in cx.wt_in:
            n = entry_after[u] + (p.vm - vm_entry)
            p(f"s_waitcnt vmcnt({min(n,63)})")
        else:
            p.wait_vm(cx.wt_in[u] if cur else nxt[u])
    cx.wt_in = {}
    rt = cx.rt
    now, later = switch_items()
    cs_items(cx, name, gaps)
    for e in range(28):
        st = A_RING + 8 * (e % 4)
        p.wait_lg(rt[e])
        p(f"v_mfma_f32_32x32x16_bf16 {vr(V_ACC,16)}, {ar(st,4)}, {vr(V_X+4*e,4)}, {vr(V_ACC,16) if e else 0}")
        if e % 4 == 1:
            v = (e + 3) // 4
            if v < 7: wait_piece(2 * v + 1)
            elif not last: wait_piece(1, cur=False)
            if cx.pre_bar.get((name, v)): cx.pre_bar[(name, v)](p)
            if v == 7: p.wait_lg(cx.xwt)
            p("s_barrier")
        if not (last and e + 3 >= 28): ring_reads(p, e + 3, 0)
        gaps.emit(p, 2 * e)
        p(f"v_mfma_f32_32x32x16_bf16 {vr(V_ACC+16,16)}, {ar(st+4,4)}, {vr(V_X+4*e,4)}, {vr(V_ACC+16,16) if e else 0}")
        if not (last and e + 3 >= 28): ring_reads(p, e + 3, 1)
        rt[e + 3] = p.lgtag()
        if e % 4 == 1:
            v = (e + 3) // 4
            uo = (2 * v - 3) % 14
            p(f"s_add_u32 m0, {sr(S_WBLK)}, {pos(2*v-2)*1024}")
            p(f"buffer_load_dwordx4 {vr(V_WB)}, {sr(S_W,4)}, {sr(S_C+(uo>>1))} offen offset:1024 lds")
            if v == 1: cx.wt_in[13] = p.vmtag()
            else: nxt[uo] = p.vmtag()
            if v == 1: p(now)
        if e % 4 == 2:
            v = (e + 2) // 4
            p(f"s_add_u32 m0, {sr(S_WBLK)}, {pos(2*v-2)*1024}")
            p(f"buffer_load_dwordx4 {vr(V_WA)}, {sr(S_W,4)}, {sr(S_C+v-1)} offen lds")
            nxt[2 * v - 2] = p.vmtag()
            if v == 1:
                p(later[0]); p(later[1])
            elif v < 7:
                p(later[v])
        if e == 3 and not last:
            p(f"s_mov_b32 {sr(S_B+2)}, {sr(S_NBREC)}")
            p(f"buffer_load_ushort {vr(V_NB)}, {vr(V_BO)}, {sr(S_B,4)}, {sr(S_NBOFF)} offen")
            p(f"buffer_load_ushort {vr(V_NB+1)}, {vr(V_BO)}, {sr(S_B,4)}, {sr(S_NBOFF)} offen offset:64")
            cx.btag = p.vmtag()
        gaps.emit(p, 2 * e + 1)
    cx.rt = {0: rt[28], 1: rt[29], 2: rt[30]}
    cx.rt_after = {k: p.lg - rt[28 + k] for k in range(3)}
    cx.exit_after = {u: p.vm - t for u, t in nxt.items()}
    if not last:
        p.wait_vm(cx.btag)
        p(f"v_mov_b32 {vr(V_B0)}, {vr(V_NB)}\nv_mov_b32 {vr(V_B1)}, {vr(V_NB+1)}")
    cx.nxt = nxt

def m0_guard(items):
    return items

def w2_dma_items(cx, pr, slot):
    so = sr(S_T1)
    if pr < 12: a = f"s_mul_i32 {so}, {sr(S_TAB+pr)}, 14"
    else: a = f"s_mov_b32 {so}, {pr*114688}"
    its = []
    n = OPT.get("dgrp", 1)
    for k in range(0, 4, n):
        def f(p, k=k):
            p(f"s_add_u32 m0, {sr(S_WBLK)}, {(20+4*slot)*1024}")
            if k == 0: p(a)
            for kk in range(k, k + n):
                p(f"buffer_load_dwordx4 {vr(V_W2+kk)}, {sr(S_W2,4)}, {so} offen offset:{kk*1024} lds")
            cx.w2t[pr] = p.vmtag()
        its.append(F(f, (2 if k == 0 else 1) + n))
    return its
def w2_dma_block(p, cx, pr, slot):
    so = sr(S_T1)
    if pr < 12: p(f"s_mul_i32 {so}, {sr(S_TAB+pr)}, 14")
    else: p(f"s_mov_b32 {so}, {pr*114688}")
    p(f"s_add_u32 m0, {sr(S_WBLK)}, {(20+4*slot)*1024}")
    for k in range(4):
        p(f"buffer_load_dwordx4 {vr(V_W2+k)}, {sr(S_W2,4)}, {so} offen offset:{k*1024} lds")
    cx.w2t[pr] = p.vmtag()
def w2_read_items(cx, pr, slot, after=None):
    its = []
    def w(p):
        if after is not None: p(f"s_waitcnt vmcnt({min(63, after(p))})")
        else: p.wait_vm(cx.w2t[pr])
    its.append(F(w, 1))
    for un in range(2):
        for ct in range(2):
            u = 2 * pr + un
            its.append("\n".join(f"ds_read_b64_tr_b16 {ar(8*u+4*ct+2*t,2)}, {vr(V_A0+ct)} offset:{(20+4*slot+2*un+t)*1024}" for t in range(2)))
    return its

def d_items(s):
    its = []
    for q in range(4):
        b = V_X + 16 * s + 4 * q
        t = 108 + 8 * (q & 1)
        if OPT["dstyle"] == "dot":
            for k in range(4):
                its.append(f"v_dot2_f32_bf16 {vr(t+2*k)}, {vr(b+k)}, {sr(S_K1)}, v104\nv_dot2_f32_bf16 {vr(t+2*k+1)}, {vr(b+k)}, {sr(S_K2)}, v104")
        else:
            for k in range(4):
                its.append(f"v_lshlrev_b32 {vr(t+2*k)}, 16, {vr(b+k)}\nv_and_b32 {vr(t+2*k+1)}, {sr(S_K2)}, {vr(b+k)}")
            for k in range(4):
                its.append(f"v_add_f32 {vr(t+2*k)}, v104, {vr(t+2*k)}\nv_add_f32 {vr(t+2*k+1)}, v104, {vr(t+2*k+1)}")
        for k in range(0, 4, 2):
            its.append(f"v_cvt_pk_bf16_f32 {vr(b+k)}, {vr(t+2*k)}, {vr(t+2*k+1)}\nv_cvt_pk_bf16_f32 {vr(b+k+1)}, {vr(t+2*k+2)}, {vr(t+2*k+3)}")
    return its

def save_phi(i): return f"v_fma_f32 {vr(V_SV+i)}, {vr(V_ACC+i)}, {vr(V_RSL)}, {sr(S_EPS)}"
def save_mul(i): return f"v_mul_f32 {vr(V_SV+i)}, {vr(V_RS)}, {vr(V_ACC+i)}"
def save_max(i): return f"v_mul_f32_e64 {vr(V_SV+i)}, {vr(V_ACC+i)}, |{vr(V_ACC+i)}|"

def phi_items(lo, hi, T):
    its = []
    for i in range(lo, hi, 2):
        t = T + 2 * ((i >> 1) & 1)
        its.append(f"v_exp_f32 {vr(t)}, {vr(V_SV+i)} clamp\nv_exp_f32 {vr(t+1)}, {vr(V_SV+i+1)} clamp")
        its.append(f"v_max_f32 {vr(V_SV+i)}, {sr(S_EPS)}, {vr(V_SV+i)}\nv_max_f32 {vr(V_SV+i+1)}, {sr(S_EPS)}, {vr(V_SV+i+1)}")
        its.append(f"v_fma_f32 {vr(t)}, {vr(V_SV+i)}, {sr(S_LN2)}, {vr(t)}\nv_fma_f32 {vr(t+1)}, {vr(V_SV+i+1)}, {sr(S_LN2)}, {vr(t+1)}")
        its.append(f"v_cvt_pk_bf16_f32 {vr(V_SV+i//2)}, {vr(t)}, {vr(t+1)}")
    return its

def h_items(cx, store=True):
    its = []
    for q in range(4):
        for i in range(8 * q, 8 * q + 8, 4):
            its.append(f"v_cvt_pk_bf16_f32 {vr(V_SV+i//2)}, {vr(V_SV+i)}, {vr(V_SV+i+1)}\nv_cvt_pk_bf16_f32 {vr(V_SV+i//2+1)}, {vr(V_SV+i+2)}, {vr(V_SV+i+3)}")
            its.append(f"v_pk_max_i16 {vr(V_SV+i//2)}, {vr(V_SV+i//2)}, 0\nv_pk_max_i16 {vr(V_SV+i//2+1)}, {vr(V_SV+i//2+1)}, 0")
        its.append(st_item(cx, q))
    return its
def st_item(cx, q):
    def f(p):
        p(f"buffer_store_dwordx4 {vr(V_SV+4*q,4)}, {vr(V_L16)}, {sr(S_WS,4)}, {sr(S_ST)} offen offset:{q*1024} sc1")
        cx.sttag = p.vmtag()
    return F(f, 1)
def q_items(cx, T):
    its = []
    for q in range(4):
        its += phi_items(8 * q, 8 * q + 8, T)
        its.append(f"v_permlane32_swap_b32 {vr(V_SV+4*q)}, {vr(V_SV+4*q+2)}\nv_permlane32_swap_b32 {vr(V_SV+4*q+1)}, {vr(V_SV+4*q+3)}")
        its.append(st_item(cx, q))
    return its

def st_addr_h(g):
    return f"""s_lshl_b32 {sr(S_ST)}, {sr(S_R)}, 2
    s_add_u32 {sr(S_ST)}, {sr(S_ST)}, {sr(S_WV)}
    s_mul_i32 {sr(S_ST)}, {sr(S_ST)}, {112*1024}
    s_lshl_b32 {sr(S_T0)}, {g}, 12
    s_add_u32 {sr(S_ST)}, {sr(S_ST)}, {sr(S_T0)}"""

def next_h(g):
    return f"""s_mov_b64 {sr(S_NB,2)}, {sr(S_W1,2)}
    s_cmp_lt_u32 {g}, 28
    s_cselect_b32 {sr(S_NREC)}, 1605632, 0
    s_cselect_b32 {sr(S_NBREC)}, 3584, 0
    s_lshl_b32 {sr(S_NCOL)}, {g}, 7
    s_mov_b32 {sr(S_NBOFF)}, {sr(S_NCOL)}
    s_movk_i32 {sr(S_NSTR)}, 3584
    s_mov_b32 {sr(S_NST2)}, {64*3584}"""

def flag_post(val_s, voff):
    return f"v_mov_b32 {vr(V_FT)}, {val_s}\nbuffer_store_dword {vr(V_FT)}, {voff}, {sr(S_WS,4)}, 0 offen sc1"
```

```python
import re

TRANS = ("v_exp_f32", "v_log_f32", "v_rcp_f32", "v_rsq_f32", "v_sqrt_f32", "v_sin_f32", "v_cos_f32", "v_rcp_iflag_f32")
REGRE = re.compile(r"\b([vas])(?:(\d+)|\[(\d+):(\d+)\])")

def regs_of(tok):
    out = set()
    t = tok.strip()
    if t.startswith("vcc"):
        return {("s", 106), ("s", 107)}
    if t == "m0":
        return {("m0", 0)}
    if t.startswith("exec"):
        return {("exec", 0)}
    for m in REGRE.finditer(t):
        k = m.group(1)
        if m.group(2) is not None:
            out.add((k, int(m.group(2))))
        else:
            for i in range(int(m.group(3)), int(m.group(4)) + 1):
                out.add((k, i))
    return out

class Ins:
    def __init__(self, text):
        self.text = text
        t = text.split(";")[0].strip()
        self.raw = t
        self.kind = "other"
        self.op = ""
        self.dst = set(); self.src = set(); self.srcC = set(); self.srcAB = set(); self.data = set()
        self.passes = 0
        self.states = 1
        if not t or t.endswith(":") or t.startswith("."):
            self.kind = "label" if t.endswith(":") else "none"
            self.states = 0
            return
        sp = t.split(None, 1)
        op = sp[0]
        for suf in ("_e32", "_e64", "_dpp", "_sdwa"):
            if op.endswith(suf):
                op = op[: -len(suf)]
        self.op = op
        rest = sp[1] if len(sp) > 1 else ""
        ops = []; cur = ""; d = 0
        for ch in rest:
            if ch == "[": d += 1
            if ch == "]": d -= 1
            if ch == "," and d == 0:
                ops.append(cur); cur = ""
            else:
                cur += ch
        ops.append(cur)
        ops = [o.strip() for o in ops]
        if ops:
            last = ops[-1].split()
            self.mods = last[1:]
            ops[-1] = last[0] if last else ""
        self.ops = ops
        if op == "s_nop":
            self.kind = "salu"; self.states = int(ops[0], 0) + 1; return
        if op.startswith("v_mfma"):
            self.kind = "mfma"
            self.passes = 8 if "32x32x16" in op else 4
            self.dst = regs_of(ops[0]); self.srcAB = regs_of(ops[1]) | regs_of(ops[2]); self.srcC = regs_of(ops[3])
            self.src = self.srcAB | self.srcC
            self.cstr = ops[3]; self.dstr = ops[0]
            return
        if op.startswith("v_"):
            self.kind = "valu"
            self.dst = regs_of(ops[0])
            k = 1
            if op in ("v_add_co_u32", "v_sub_co_u32", "v_addc_co_u32", "v_subb_co_u32", "v_subrev_co_u32"):
                self.dst |= regs_of(ops[1]); k = 2
            for o in ops[k:]:
                self.src |= regs_of(o)
            if op.startswith("v_permlane") and "swap" in op:
                self.dst |= regs_of(ops[1]); self.src |= regs_of(ops[0])
            if op.startswith(("v_dot2c", "v_fmac", "v_mac", "v_pk_fmac", "v_dot4c", "v_writelane")):
                self.src |= regs_of(ops[0])
            if op.startswith("v_cndmask") and len(ops) == 3:
                self.src |= regs_of("vcc")
            if op.startswith("v_cmpx"):
                self.dst |= {("exec", 0)}
            return
        if op.startswith("ds_"):
            self.kind = "ds"
            if op.startswith(("ds_read", "ds_bpermute", "ds_permute", "ds_swizzle")):
                self.dst = regs_of(ops[0])
                for o in ops[1:]: self.src |= regs_of(o)
            else:
                for o in ops: self.src |= regs_of(o)
            return
        if op.startswith(("buffer_", "global_")):
            self.kind = "vmem"
            self.lds = "lds" in self.mods
            if "load" in op and not self.lds:
                self.dst = regs_of(ops[0])
                for o in ops[1:]: self.src |= regs_of(o)
            else:
                for o in ops: self.src |= regs_of(o)
                if "store" in op and ("x3" in op or "x4" in op):
                    self.data = regs_of(ops[0]) if op.startswith("buffer_") else regs_of(ops[1])
                if "atomic" in op and "sc0" in self.mods:
                    self.dst = regs_of(ops[0])
            if self.lds: self.src |= {("m0", 0)}
            return
        if op.startswith("s_"):
            self.kind = "salu"
            if op.startswith(("s_cmp", "s_cbranch", "s_branch", "s_waitcnt", "s_barrier", "s_endpgm", "s_setpc", "s_sleep", "s_setprio", "s_bitcmp", "s_set_gpr")):
                for o in ops: self.src |= regs_of(o)
            else:
                self.dst = regs_of(ops[0])
                for o in ops[1:]: self.src |= regs_of(o)
            return

def vonly(s):
    return {r for r in s if r[0] in ("v", "a")}
def sonly(s):
    return {r for r in s if r[0] == "s"}

def need(p, c):
    n = 0
    if p.kind == "valu":
        pv = vonly(p.dst); ps = sonly(p.dst)
        isdot = p.op.startswith("v_dot")
        if c.kind == "mfma" and pv & c.src: n = max(n, 3 if isdot else 2)
        if c.kind == "valu":
            if c.op.startswith("v_permlane") and pv & c.src: n = max(n, 2)
            if "dpp" in c.raw and pv & c.src: n = max(n, 2)
            if c.op in ("v_readfirstlane_b32", "v_readlane_b32") and pv & c.src: n = max(n, 1)
            if p.op in TRANS and pv & c.src: n = max(n, 1)
            if ps & c.src: n = max(n, 4 if c.op in ("v_readlane_b32", "v_writelane_b32") else 2)
            if isdot and pv & (c.src | c.dst):
                if c.op == p.op and not (pv & (regs_of(c.ops[1]) | regs_of(c.ops[2]))): pass
                else: n = max(n, 3)
            if "op_sel" in p.raw and not p.op.startswith("v_pk") and not isdot and pv & (c.src | c.dst): n = max(n, 1)
        if c.kind in ("vmem", "ds"):
            if c.kind == "vmem" and ps & c.src: n = max(n, 5)
            if isdot and pv & c.src: n = max(n, 3)
            if p.op in TRANS and pv & c.src: n = max(n, 1)
        if ("exec", 0) in p.dst:
            if c.kind == "mfma" or c.op.startswith(("v_permlane", "v_readfirstlane", "v_readlane", "v_writelane")): n = max(n, 4)
            if "dpp" in c.raw: n = max(n, 5)
    if p.kind == "mfma":
        big = 12 if p.passes == 8 else 8
        if c.kind in ("valu", "vmem", "ds") and p.dst & (c.src | c.dst): n = max(n, big)
        if c.kind == "mfma":
            if p.dst & c.srcAB: n = max(n, big)
            if p.dst & c.srcC and not (c.cstr == p.dstr and c.passes == p.passes): n = max(n, big - 2)
            if p.dst & c.dst and not (p.dst & c.srcC): n = max(n, big)
        if c.kind == "valu" and p.srcC & c.dst: n = max(n, 7 if p.passes == 8 else 3)
    if p.kind == "salu" and ("m0", 0) in p.dst and ("m0", 0) in c.src and c.kind == "vmem": n = max(n, 1)
    if p.kind == "vmem" and p.data and (p.data & c.dst): n = max(n, 2 if c.kind == "valu" else 1)
    return n

HOIST = [True]
def hoist_m0(lines):
    L = list(lines)
    for i in range(1, len(L) - 1):
        a, b, c = L[i - 1].strip(), L[i].strip(), L[i + 1].strip()
        if not (b.startswith("s_add_u32 m0,") and c.startswith("buffer_load") and c.endswith(" lds")): continue
        op = a.split()[0] if a else ""
        if not a or a.endswith(":") or "m0" in a or a.endswith(" lds") or a.startswith((";", ".")): continue
        if op.startswith(("s_cselect", "s_cbranch", "s_branch", "s_addc", "s_subb", "s_cmp", "s_endpgm", "s_setpc", "s_swappc", "s_cmov")): continue
        L[i - 1], L[i] = L[i], L[i - 1]
    return L

import os
DROPW = [os.environ.get("DW", "")]
def drop_waits(lines):
    import re
    INF = 99
    vm = lg = INF
    out = []
    nd = nm = 0
    reg = "a"
    for ln in lines:
        t = ln.split(";")[0].strip()
        if t == "L_CF_ok:": reg = "b"
        if t == "L_EJ:": reg = "c"
        if t == "L_PL_ok:": reg = "d"
        if t == "L_IDLE:": reg = "i"
        if reg not in DROPW[0] and t.startswith("s_waitcnt"):
            vm = lg = INF; out.append(ln + " ;keep"); continue
        if not t:
            out.append(ln); continue
        if t.endswith(":") or t.startswith("."):
            vm = lg = INF; out.append(ln); continue
        op = t.split()[0]
        if op == "s_waitcnt":
            m = re.search(r"vmcnt\((\d+)\)", t); n = re.search(r"lgkmcnt\((\d+)\)", t)
            rest = re.sub(r"(vmcnt|lgkmcnt)\(\d+\)", "", t[len(op):]).strip(" &,")
            if rest or (not m and not n):
                out.append(ln); continue
            a = int(m.group(1)) if m and int(m.group(1)) < vm else None
            b = int(n.group(1)) if n and int(n.group(1)) < lg else None
            if a is None and b is None:
                nd += 1; continue
            if a is not None: vm = a
            if b is not None: lg = b
            prev = out[-1].strip() if out else ""
            if prev.startswith("s_waitcnt ") and re.fullmatch(r"s_waitcnt( (vmcnt|lgkmcnt)\(\d+\))+", prev):
                pm = re.search(r"vmcnt\((\d+)\)", prev); pn = re.search(r"lgkmcnt\((\d+)\)", prev)
                if a is None and pm: a = int(pm.group(1))
                if b is None and pn: b = int(pn.group(1))
                out.pop(); nm += 1
            txt = "  s_waitcnt" + (f" vmcnt({a})" if a is not None else "") + (f" lgkmcnt({b})" if b is not None else "")
            out.append(txt); continue
        if op.startswith(("buffer_", "global_", "flat_", "scratch_")): vm = min(INF, vm + 1)
        if op.startswith(("ds_", "s_load", "s_buffer", "s_mem", "s_send", "s_getreg", "flat_")): lg = min(INF, lg + 1)
        out.append(ln)
    import sys
    print("drop_waits: dropped", nd, "merged", nm, file=sys.stderr)
    return out

def pad_hazards(lines):
    if DROPW[0]: lines = drop_waits(lines)
    if HOIST[0]: lines = hoist_m0(lines)
    out = []
    hist = []
    for text in lines:
        c = Ins(text)
        if c.kind in ("none", "label"):
            out.append(text); continue
        req = 0
        dist = 0
        for p in reversed(hist):
            r = need(p, c) - dist
            if r > req: req = r
            dist += p.states
            if dist > 14: break
        if req > 0:
            nop = Ins(f"s_nop {req-1}")
            out.append(f"  s_nop {req-1}")
            hist.append(nop)
        out.append(text)
        hist.append(c)
        if len(hist) > 40: hist = hist[-20:]
    return out

class Prog:
    def __init__(self):
        self.lines = []
        self.vm = 0
        self.lg = 0
        self.uid = 0
    def __call__(self, text):
        for l in text.strip("\n").split("\n"):
            l = l.strip()
            if not l: continue
            op = l.split()[0]
            if op.startswith(("buffer_", "global_")): self.vm += 1
            if op.startswith("ds_"): self.lg += 1
            self.lines.append(l if l.endswith(":") else "  " + l)
        return self
    def label(self, base):
        self.uid += 1
        return f"L{base}_{self.uid}"
    def vmtag(self): return self.vm
    def lgtag(self): return self.lg
    def wait_vm(self, tag):
        n = self.vm - tag
        assert n >= 0
        self(f"s_waitcnt vmcnt({min(n,63)})")
    def wait_lg(self, tag):
        n = self.lg - tag
        assert n >= 0
        self(f"s_waitcnt lgkmcnt({min(n,15)})")
    def text(self):
        return "\n".join(pad_hazards(self.lines))
```
